```python
import torch

def _softmax(x, axis=-1):
    return torch.softmax(x, dim=axis)
def _gelu(x):
    return torch.nn.functional.gelu(x, approximate="tanh")
def _silu(x):
    return torch.nn.functional.silu(x)
def _sigmoid(x):
    return torch.sigmoid(x)
def _layernorm(x, axis=-1, eps=1e-5):
    m = x.mean(dim=axis, keepdim=True)
    v = x.var(dim=axis, keepdim=True, unbiased=False)
    return (x - m) / torch.sqrt(v + eps)
def _scatter_add(tgt, idx, src, axis=0):
    return tgt.clone().index_add_(axis, idx, src)
def _segment_sum(src, seg, n):
    out = torch.zeros((n,) + src.shape[1:], dtype=src.dtype)
    return out.index_add_(0, seg, src)
def _pad(x, pw):
    flat = tuple(v for pair in reversed(pw) for v in pair)
    return torch.nn.functional.pad(x, flat)

kernel_name = 'sequential_preLN__sliding_block__dense_activation_relu__prompt'

def setup_inputs():

    _w = (lambda a: (lambda t: t.to(torch.bfloat16) if t.is_floating_point() else t)(torch.as_tensor(a)))
    def _A_setup():
        B, S, D = 1, 2048, 512
        return {
            "x": _w((lambda *s: torch.randn(*s, dtype=torch.bfloat16) * 0.05)(B, S, D)),
            "wqkv": _w((lambda *s: torch.randn(*s, dtype=torch.bfloat16) * 0.05)(D, 3 * D)),
            "wo": _w((lambda *s: torch.randn(*s, dtype=torch.bfloat16) * 0.05)(D, D)),
        }
    _A_in = _A_setup()

    def _B_setup():
        B, S, D, Dff = 1, 2048, 512, 1376
        return {
            "x": _w((lambda *s: torch.randn(*s, dtype=torch.bfloat16) * 0.05)(B, S, D)),
            "w1": _w((lambda *s: torch.randn(*s, dtype=torch.bfloat16) * 0.05)(D, Dff)),
            "w2": _w((lambda *s: torch.randn(*s, dtype=torch.bfloat16) * 0.05)(Dff, D)),
        }
    _B_in = _B_setup()

    return {
        "A_x": _A_in["x"],
        "A_wqkv": _A_in["wqkv"],
        "A_wo": _A_in["wo"],
        "B_x": _B_in["x"],
        "B_w1": _B_in["w1"],
        "B_w2": _B_in["w2"],
    }

def reference(A_x, A_wqkv, A_wo, B_x, B_w1, B_w2):
    def _A_ref(x, wqkv, wo):
        B, S, D = x.shape
        H = 32; Dh = D // H; W = 256
        qkv = (lambda x, *d: x.permute(*d))((x @ wqkv).reshape(B, S, 3, H, Dh), 2, 0, 3, 1, 4)
        q, k, v = qkv[0], qkv[1], qkv[2]
        scores = torch.einsum("bhqd,bhkd->bhqk", q, k) * (Dh ** -0.5)
        idx = torch.arange(S)
        mask = (idx[:, None] - idx[None, :] >= 0) & (idx[:, None] - idx[None, :] < W)
        scores = torch.where(mask[None, None], scores, -1e9)
        p = _softmax(scores, axis=-1)
        o = torch.einsum("bhqk,bhkd->bhqd", p, v)
        return (lambda x, *d: x.permute(*d))(o, 0, 2, 1, 3).reshape(B, S, D) @ wo

    def _B_ref(x, w1, w2):
        h = torch.einsum("bsd,df->bsf", x, w1)
        zero = torch.zeros_like(h)
        h = torch.maximum(h, zero)
        return torch.einsum("bsf,fd->bsd", h, w2)

    x = A_x
    h = x + _A_ref(_layernorm(x, axis=-1), A_wqkv, A_wo)
    h2 = h + _B_ref(_layernorm(h, axis=-1), B_w1, B_w2)
    return h2
```

```python
import sys, struct

def f2h(x):
    return "0x%08x" % struct.unpack("<I", struct.pack("<f", x))[0]

NAME = "sequential_preLN__sliding_block__dense_activation_relu__prompt"
S = 2048
D = 512
DFF = 1376
MB = 1 << 20
WS_QK = 0
WS_VT = 4 * MB
WS_O = 8 * MB
WS_H = 12 * MB
WS_H1 = 16 * MB
WS_SIZE = 32 * MB


class Em:
    def __init__(self):
        self.l = []
        self.vmq = []

    def __call__(self, s):
        self.l.append("    " + s)

    def label(self, s):
        self.l.append(s + ":")

    def vm(self, tag, s):
        self.l.append("    " + s)
        self.vmq.append(tag)

    def vmwait(self, tags):
        idx = -1
        for i, t in enumerate(self.vmq):
            if t in tags:
                idx = i
        if idx < 0:
            return
        n = len(self.vmq) - idx - 1
        assert n <= 63
        self(f"s_waitcnt vmcnt({n})")
        self.vmq = self.vmq[idx + 1:]

    def text(self):
        return "\n".join(self.l) + "\n"


def srd(e, d, lo, hi, size):
    e(f"s_mov_b32 s{d}, s{lo}")
    e(f"s_and_b32 s{d+1}, s{hi}, 0xffff")
    e(f"s_mov_b32 s{d+2}, {size}")
    e(f"s_mov_b32 s{d+3}, 0x00020000")


def srd_off(e, d, lo, hi, off, size):
    e(f"s_add_u32 s{d}, s{lo}, {off}")
    e(f"s_addc_u32 s{d+1}, s{hi}, 0")
    e(f"s_and_b32 s{d+1}, s{d+1}, 0xffff")
    e(f"s_mov_b32 s{d+2}, {size}")
    e(f"s_mov_b32 s{d+3}, 0x00020000")


def rne_bf16(e, v, tmp):
    e(f"v_cvt_pk_bf16_f32 v{tmp}, v{v}, v{v}")
    e(f"v_lshlrev_b32 v{v}, 16, v{tmp}")


def half_combine(e, v, tmp):
    e(f"v_mov_b32 v{tmp}, v{v}")
    e("s_nop 1")
    e(f"v_permlane32_swap_b32 v{v}, v{tmp}")
    e("s_nop 1")
    e(f"v_add_f32 v{v}, v{v}, v{tmp}")


def gemm_kernel(e, name, kind):
    cfg = {
        'qkv': dict(K=512, NT=3, RS=256, ln=True, ldw=3072, wslot=8, nwg=256),
        'wo': dict(K=512, NT=1, RS=64, ln=False, ldw=1024, wslot=16, nwg=256),
        'w1': dict(K=512, NT=3, RS=256, ln=True, ldw=2752, wslot=32, nwg=240),
        'w2': dict(K=1376, NT=1, RS=64, ln=False, ldw=1024, wslot=40, nwg=256),
    }[kind]
    K, NT, RS, ln, ldw = cfg['K'], cfg['NT'], cfg['RS'], cfg['ln'], cfg['ldw']
    nks = K // 16
    PS = 8
    nph = (nks + PS - 1) // PS
    lda = 2752 if kind == 'w2' else 1024
    rows_per_dma = 1024 // RS
    VA0 = 64
    NBUF = min(nph, 5)
    VACC = VA0 + NBUF * 32
    VB = 16
    VT = 40
    vLane, vAoff, vBoff = 1, 2, 3
    vSum, vSq = 4, 5
    vCs = 6
    vT0, vT1, vT2, vT3 = 9, 10, 11, 12
    vH = 13
    vRow = 14
    VRES = 44
    VE = 52
    LDS_B = 0
    LDS_SCR = nks * 16 * RS
    lds_total = LDS_SCR + 4 * 1024
    endl = f"L_{name}_end"

    e.label(name)
    e(f"s_cmp_ge_u32 s2, {cfg['nwg']}")
    e(f"s_cbranch_scc1 {endl}")
    e("s_load_dwordx2 s[4:5], s[0:1], 0")
    e(f"s_load_dwordx2 s[6:7], s[0:1], {cfg['wslot']}")
    e("s_load_dwordx2 s[8:9], s[0:1], 64")
    e("s_load_dwordx2 s[10:11], s[0:1], 48")
    e("s_and_b32 s24, s2, 7")
    e("s_lshr_b32 s25, s2, 3")
    e("s_and_b32 s26, s25, 1")
    e("s_lshl_b32 s24, s24, 1")
    e("s_add_u32 s24, s24, s26")
    e("s_lshr_b32 s25, s25, 1")
    e(f"v_and_b32 v{vLane}, 63, v0")
    e(f"v_lshrrev_b32 v{vT0}, 6, v0")
    e("s_nop 0")
    e(f"v_readfirstlane_b32 s26, v{vT0}")
    e(f"v_lshrrev_b32 v{vH}, 5, v{vLane}")
    e("s_waitcnt lgkmcnt(0)")
    if kind == 'qkv':
        srd(e, 12, 4, 5, S * D * 2)
    elif kind == 'wo':
        srd_off(e, 12, 8, 9, WS_O, S * D * 2)
    elif kind == 'w1':
        srd_off(e, 12, 8, 9, WS_H, S * D * 2)
    else:
        srd_off(e, 12, 8, 9, WS_H1, S * DFF * 2)
    srd(e, 16, 6, 7, K * ldw)
    srd(e, 20, 8, 9, WS_SIZE)
    if kind == 'wo':
        srd(e, 28, 4, 5, S * D * 2)
        srd_off(e, 32, 8, 9, WS_H, S * D * 2)
    elif kind == 'w2':
        srd_off(e, 28, 8, 9, WS_H, S * D * 2)
        srd(e, 32, 10, 11, S * D * 2)
    elif kind == 'w1':
        srd_off(e, 32, 8, 9, WS_H1, S * DFF * 2)
    e("s_lshl_b32 s27, s24, 7")
    e("s_lshl_b32 s36, s26, 5")
    e("s_add_u32 s27, s27, s36")
    e(f"v_and_b32 v{vT0}, 31, v{vLane}")
    e(f"v_add_u32 v{vRow}, s27, v{vT0}")
    e(f"s_mov_b32 s36, {lda}")
    e(f"v_mul_lo_u32 v{vAoff}, v{vRow}, s36")
    e(f"v_lshlrev_b32 v{vT0}, 4, v{vH}")
    e(f"v_add_u32 v{vAoff}, v{vAoff}, v{vT0}")
    if RS == 256:
        e(f"v_lshrrev_b32 v{vT0}, 4, v{vLane}")
        e(f"v_and_b32 v{vT1}, 15, v{vLane}")
        e(f"v_lshlrev_b32 v{vT2}, 2, v{vT0}")
        e(f"v_xor_b32 v{vT1}, v{vT1}, v{vT2}")
        e(f"s_mov_b32 s36, {ldw}")
        e(f"v_mul_lo_u32 v{vBoff}, v{vT0}, s36")
        if kind == 'qkv':
            e("s_lshl_b32 s36, s25, 7")
            e("s_lshl_b32 s37, s25, 6")
            e("s_add_u32 s37, s37, 2048")
            e(f"v_lshlrev_b32 v{vT2}, 4, v{vT1}")
            e(f"v_add_u32 v{vT2}, s36, v{vT2}")
            e(f"v_and_b32 v{vT3}, 3, v{vT1}")
            e(f"v_lshlrev_b32 v{vT3}, 4, v{vT3}")
            e(f"v_add_u32 v{vT3}, s37, v{vT3}")
            e(f"v_cmp_gt_u32 vcc, 8, v{vT1}")
            e("s_nop 1")
            e(f"v_cndmask_b32 v{vT2}, v{vT3}, v{vT2}, vcc")
            e(f"v_add_u32 v{vBoff}, v{vBoff}, v{vT2}")
        else:
            e("s_mul_i32 s36, s25, 192")
            e(f"v_lshlrev_b32 v{vT2}, 4, v{vT1}")
            e(f"v_add_u32 v{vT2}, s36, v{vT2}")
            e(f"v_add_u32 v{vBoff}, v{vBoff}, v{vT2}")
        e(f"v_cmp_gt_u32 vcc, 12, v{vT1}")
        e("s_mov_b64 s[38:39], vcc")
    else:
        e(f"v_lshrrev_b32 v{vT0}, 2, v{vLane}")
        e(f"v_and_b32 v{vT1}, 3, v{vLane}")
        e(f"s_mov_b32 s36, {ldw}")
        e(f"v_mul_lo_u32 v{vBoff}, v{vT0}, s36")
        e("s_lshl_b32 s36, s25, 6")
        e(f"v_lshlrev_b32 v{vT2}, 4, v{vT1}")
        e(f"v_add_u32 v{vT2}, s36, v{vT2}")
        e(f"v_add_u32 v{vBoff}, v{vBoff}, v{vT2}")
    e(f"v_lshrrev_b32 v{vT0}, 2, v{vLane}")
    e(f"v_and_b32 v{vT0}, 3, v{vT0}")
    e(f"v_lshlrev_b32 v{vT1}, 3, v{vH}")
    e(f"v_add_u32 v{vT1}, v{vT1}, v{vT0}")
    e(f"s_mov_b32 s36, {RS}")
    e(f"v_mul_lo_u32 v{vT1}, v{vT1}, s36")
    e(f"v_lshrrev_b32 v{vT2}, 4, v{vLane}")
    e(f"v_and_b32 v{vT2}, 1, v{vT2}")
    e(f"v_lshlrev_b32 v{vT2}, 5, v{vT2}")
    e(f"v_and_b32 v{vT3}, 3, v{vLane}")
    e(f"v_lshlrev_b32 v{vT3}, 3, v{vT3}")
    e(f"v_add_u32 v{vT1}, v{vT1}, v{vT2}")
    e(f"v_add_u32 v{vT1}, v{vT1}, v{vT3}")
    for t in range(NT):
        if RS == 256:
            e(f"v_xor_b32 v{vT2}, {t}, v{vT0}")
            e(f"v_lshlrev_b32 v{vT2}, 6, v{vT2}")
            e(f"v_add_u32 v{VT+t}, v{vT1}, v{vT2}")
        else:
            e(f"v_mov_b32 v{VT+t}, v{vT1}")
    if kind in ('wo', 'w2'):
        e(f"v_lshlrev_b32 v{vT0}, 10, v{vRow}")
        e(f"v_lshlrev_b32 v{vT1}, 4, v{vH}")
        e(f"v_add_u32 v{vT0}, v{vT0}, v{vT1}")
        e("s_lshl_b32 s36, s25, 6")
        e(f"v_add_u32 v{VE}, s36, v{vT0}")
    e("s_mov_b32 s40, 0x3f803f80")
    if ln:
        e(f"v_mov_b32 v{vSum}, 0")
        e(f"v_mov_b32 v{vSq}, 0")
        for t in range(NT):
            e(f"v_mov_b32 v{vCs+t}, 0")

    ndma_total = (nks * 16 * RS) // 1024

    def issue_B(p):
        k0 = p * PS * 16
        k1 = min(K, k0 + PS * 16)
        i0 = k0 // rows_per_dma
        i1 = (k1 + rows_per_dma - 1) // rows_per_dma
        n = i1 - i0
        per = (n + 3) // 4
        if RS == 256:
            e("s_mov_b64 s[42:43], exec")
            e("s_mov_b64 exec, s[38:39]")
        e(f"s_mul_i32 s41, s26, {per}")
        e(f"s_add_u32 s41, s41, {i0}")
        for j in range(per):
            need_guard = (n % 4 != 0) and (3 * per + j >= n)
            e(f"s_add_u32 s44, s41, {j}")
            if need_guard:
                e(f"s_cmp_ge_u32 s44, {i1}")
                e(f"s_cselect_b32 s44, {i1-1}, s44")
            e(f"s_lshl_b32 m0, s44, 10")
            e(f"s_mul_i32 s45, s44, {rows_per_dma * ldw}")
            e.vm(('B', p), f"buffer_load_dwordx4 v{vBoff}, s[16:19], s45 offen lds")
        if RS == 256:
            e("s_mov_b64 exec, s[42:43]")

    def issue_A(p):
        s0 = p * PS
        s1 = min(nks, s0 + PS)
        b = VA0 + (p % NBUF) * 32
        for s in range(s0, s1):
            off = s * 32
            if off <= 4095 - 16:
                e.vm(('A', p), f"buffer_load_dwordx4 v[{b+(s-s0)*4}:{b+(s-s0)*4+3}], v{vAoff}, s[12:15], 0 offen offset:{off}")
            else:
                e(f"s_mov_b32 s46, {p*PS*32}")
                e.vm(('A', p), f"buffer_load_dwordx4 v[{b+(s-s0)*4}:{b+(s-s0)*4+3}], v{vAoff}, s[12:15], s46 offen offset:{off - p*PS*32}")

    for p in range(min(nph, NBUF)):
        issue_B(p)
        issue_A(p)
        if p == 0 and kind in ('wo', 'w2'):
            e.vm('R', f"buffer_load_dwordx4 v[{VRES}:{VRES+3}], v{VE}, s[28:31], 0 offen")
            e.vm('R', f"buffer_load_dwordx4 v[{VRES+4}:{VRES+7}], v{VE}, s[28:31], 0 offen offset:32")
    nextB = min(nph, NBUF)

    def forms(t):
        if kind == 'qkv' and t == 2:
            return 'N'
        return 'T'

    def tr_reads(p, s, buf):
        sl = s - p * PS
        for t in range(NT):
            bb = VB + buf * NT * 4 + t * 4
            e(f"ds_read_b64_tr_b16 v[{bb}:{bb+1}], v{VT+t} offset:{sl*16*RS}")
            e(f"ds_read_b64_tr_b16 v[{bb+2}:{bb+3}], v{VT+t} offset:{sl*16*RS + 4*RS}")

    first = True
    for p in range(nph):
        s0 = p * PS
        s1 = min(nks, s0 + PS)
        e.vmwait([('A', p), ('B', p)])
        e("s_barrier")
        tr_reads(p, s0, 0)
        for s in range(s0, s1):
            buf = (s - s0) & 1
            if s + 1 < s1:
                tr_reads(p, s + 1, buf ^ 1)
                e(f"s_waitcnt lgkmcnt({2*NT})")
            else:
                e("s_waitcnt lgkmcnt(0)")
            a = VA0 + (p % NBUF) * 32 + (s - s0) * 4
            for t in range(NT):
                bb = VB + buf * NT * 4 + t * 4
                acc = VACC + t * 16
                c = "0" if first else f"v[{acc}:{acc+15}]"
                if forms(t) == 'T':
                    e(f"v_mfma_f32_32x32x16_bf16 v[{acc}:{acc+15}], v[{bb}:{bb+3}], v[{a}:{a+3}], {c}")
                else:
                    e(f"v_mfma_f32_32x32x16_bf16 v[{acc}:{acc+15}], v[{a}:{a+3}], v[{bb}:{bb+3}], {c}")
                if ln:
                    for j in range(4):
                        e(f"v_dot2_f32_bf16 v{vCs+t}, v{bb+j}, s40, v{vCs+t}")
                    if t == 0:
                        for j in range(4):
                            e(f"v_dot2_f32_bf16 v{vSum}, v{a+j}, s40, v{vSum}")
                    if t == 1:
                        for j in range(4):
                            e(f"v_dot2_f32_bf16 v{vSq}, v{a+j}, v{a+j}, v{vSq}")
            first = False
        if p + 1 < nph:
            for t in range(NT):
                e(f"v_add_u32 v{VT+t}, {PS*16*RS}, v{VT+t}")
        if nextB < nph:
            issue_B(nextB)
            issue_A(nextB)
            nextB += 1

    e("s_nop 15")
    scr = f"s47"
    e(f"s_lshl_b32 s47, s26, 10")
    e(f"s_add_u32 s47, s47, {LDS_SCR}")
    if ln:
        half_combine(e, vSum, vT0)
        half_combine(e, vSq, vT0)
        for t in range(NT):
            half_combine(e, vCs + t, vT0)
        e(f"v_mul_f32 v{vSum}, {f2h(1.0/512)}, v{vSum}")
        e(f"v_mul_f32 v{vSq}, {f2h(1.0/512)}, v{vSq}")
        e(f"v_fma_f32 v{vSq}, -v{vSum}, v{vSum}, v{vSq}")
        e(f"v_max_f32 v{vSq}, 0, v{vSq}")
        rne_bf16(e, vSum, vT0)
        rne_bf16(e, vSq, vT0)
        e(f"v_add_f32 v{vSq}, 0x3727c5ac, v{vSq}")
        rne_bf16(e, vSq, vT0)
        e(f"v_sqrt_f32 v{vSq}, v{vSq}")
        e("s_nop 0")
        rne_bf16(e, vSq, vT0)
        e(f"v_rcp_f32 v{vSq}, v{vSq}")
        e("s_nop 0")
        e(f"v_and_b32 v{vT0}, 31, v{vLane}")
        e(f"v_lshlrev_b32 v{vT0}, 2, v{vT0}")
        e(f"v_add_u32 v{vT0}, s47, v{vT0}")
        for t in range(NT):
            e(f"ds_write_b32 v{vT0}, v{vCs+t} offset:{t*128}")
        e(f"ds_write_b32 v{vT0}, v{vSum} offset:384")
        e(f"ds_write_b32 v{vT0}, v{vSq} offset:512")
        e(f"v_lshlrev_b32 v{vT1}, 4, v{vH}")
        e(f"v_add_u32 v{vT1}, s47, v{vT1}")
        e("s_waitcnt lgkmcnt(0)")
    for t in range(NT):
        acc = VACC + t * 16
        if forms(t) == 'T':
            if ln:
                for q in range(4):
                    e(f"ds_read_b128 v[{VE}:{VE+3}], v{vT1} offset:{t*128 + q*32}")
                    e("s_waitcnt lgkmcnt(0)")
                    for j in range(4):
                        e(f"v_fma_f32 v{acc+4*q+j}, -v{vSum}, v{VE+j}, v{acc+4*q+j}")
                        e(f"v_mul_f32 v{acc+4*q+j}, v{vSq}, v{acc+4*q+j}")
                        if kind == 'w1':
                            e(f"v_max_f32 v{acc+4*q+j}, 0, v{acc+4*q+j}")
            for q in range(4):
                e(f"v_cvt_pk_bf16_f32 v{acc+2*q}, v{acc+4*q}, v{acc+4*q+1}")
                e(f"v_cvt_pk_bf16_f32 v{acc+2*q+1}, v{acc+4*q+2}, v{acc+4*q+3}")
            e("s_nop 1")
            for pr in range(2):
                e(f"v_permlane32_swap_b32 v{acc+4*pr}, v{acc+4*pr+2}")
                e(f"v_permlane32_swap_b32 v{acc+4*pr+1}, v{acc+4*pr+3}")
            e("s_nop 1")
            if kind == 'qkv':
                e(f"s_lshl_b32 s36, s25, 2")
                e(f"s_add_u32 s36, s36, {2*t}")
                e(f"s_lshl_b32 s36, s36, 16")
                e(f"v_lshlrev_b32 v{vT2}, 5, v{vRow}")
                e(f"v_lshlrev_b32 v{vT3}, 4, v{vH}")
                e(f"v_add_u32 v{vT2}, v{vT2}, v{vT3}")
                e(f"v_add_u32 v{vT2}, s36, v{vT2}")
                e(f"s_mov_b32 s37, {WS_QK + 65536}")
                e(f"buffer_store_dwordx4 v[{acc}:{acc+3}], v{vT2}, s[20:23], 0 offen")
                e(f"buffer_store_dwordx4 v[{acc+4}:{acc+7}], v{vT2}, s[20:23], s37 offen")
            elif kind == 'w1':
                e(f"s_mul_i32 s36, s25, 3")
                e(f"s_add_u32 s36, s36, {t}")
                e(f"s_cmp_ge_u32 s36, 43")
                e(f"s_cbranch_scc1 L_{name}_skip{t}")
                e(f"s_lshl_b32 s36, s36, 6")
                e(f"s_mov_b32 s37, 2752")
                e(f"v_mul_lo_u32 v{vT2}, v{vRow}, s37")
                e(f"v_lshlrev_b32 v{vT3}, 4, v{vH}")
                e(f"v_add_u32 v{vT2}, v{vT2}, v{vT3}")
                e(f"v_add_u32 v{vT2}, s36, v{vT2}")
                e(f"buffer_store_dwordx4 v[{acc}:{acc+3}], v{vT2}, s[32:35], 0 offen")
                e(f"buffer_store_dwordx4 v[{acc+4}:{acc+7}], v{vT2}, s[32:35], 0 offen offset:32")
                e.label(f"L_{name}_skip{t}")
            else:
                e.vmwait(['R'])
                for j in range(8):
                    a_ = acc + j
                    r_ = VRES + j
                    e(f"v_lshlrev_b32 v{vT0}, 16, v{a_}")
                    e(f"v_and_b32 v{vT1}, 0xffff0000, v{a_}")
                    e(f"v_lshlrev_b32 v{vT2}, 16, v{r_}")
                    e(f"v_and_b32 v{vT3}, 0xffff0000, v{r_}")
                    e(f"v_add_f32 v{vT0}, v{vT0}, v{vT2}")
                    e(f"v_add_f32 v{vT1}, v{vT1}, v{vT3}")
                    e(f"v_cvt_pk_bf16_f32 v{a_}, v{vT0}, v{vT1}")
                e(f"buffer_store_dwordx4 v[{acc}:{acc+3}], v{VE}, s[32:35], 0 offen")
                e(f"buffer_store_dwordx4 v[{acc+4}:{acc+7}], v{VE}, s[32:35], 0 offen offset:32")
        else:
            for q in range(4):
                e(f"ds_read_b128 v[{VE}:{VE+3}], v{vT1} offset:{384 + q*32}")
                e(f"ds_read_b128 v[{VE+4}:{VE+7}], v{vT1} offset:{512 + q*32}")
                e("s_waitcnt lgkmcnt(0)")
                for j in range(4):
                    e(f"v_fma_f32 v{acc+4*q+j}, -v{VE+j}, v{vCs+t}, v{acc+4*q+j}")
                    e(f"v_mul_f32 v{acc+4*q+j}, v{VE+4+j}, v{acc+4*q+j}")
            for q in range(4):
                e(f"v_cvt_pk_bf16_f32 v{acc+2*q}, v{acc+4*q}, v{acc+4*q+1}")
                e(f"v_cvt_pk_bf16_f32 v{acc+2*q+1}, v{acc+4*q+2}, v{acc+4*q+3}")
            e("s_nop 1")
            for pr in range(2):
                e(f"v_permlane32_swap_b32 v{acc+4*pr}, v{acc+4*pr+2}")
                e(f"v_permlane32_swap_b32 v{acc+4*pr+1}, v{acc+4*pr+3}")
            e("s_nop 1")
            e(f"v_and_b32 v{vT2}, 31, v{vLane}")
            e(f"s_lshl_b32 s36, s25, 5")
            e(f"v_add_u32 v{vT2}, s36, v{vT2}")
            e(f"v_lshlrev_b32 v{vT2}, 12, v{vT2}")
            e(f"v_lshlrev_b32 v{vT3}, 4, v{vH}")
            e(f"v_add_u32 v{vT2}, v{vT2}, v{vT3}")
            e(f"s_lshl_b32 s36, s27, 1")
            e(f"s_add_u32 s36, s36, {WS_VT}")
            e(f"buffer_store_dwordx4 v[{acc}:{acc+3}], v{vT2}, s[20:23], s36 offen")
            e(f"buffer_store_dwordx4 v[{acc+4}:{acc+7}], v{vT2}, s[20:23], s36 offen offset:32")
    e.label(endl)
    e("s_endpgm")
    e.vmq = []
    return lds_total


def attn_kernel(e, name):
    endl = f"L_{name}_end"
    vLane, vH, vT0, vT1, vT2, vT3 = 1, 2, 3, 4, 5, 6
    vQoff, vKoff, vVoff = 7, 8, 9
    vMax, vSumv = 10, 11
    vQi = 12
    VQ = 16
    VK = 20
    VV = 56
    VS = 128
    VS = 56
    VV = 200
    VO = 20
    VP = 36
    e.label(name)
    e("s_cmp_ge_u32 s2, 512")
    e(f"s_cbranch_scc1 {endl}")
    e("s_load_dwordx2 s[8:9], s[0:1], 64")
    e("s_and_b32 s24, s2, 7")
    e("s_lshl_b32 s24, s24, 2")
    e("s_lshr_b32 s25, s2, 3")
    e("s_and_b32 s26, s25, 3")
    e("s_add_u32 s24, s24, s26")
    e("s_lshr_b32 s25, s2, 5")
    e(f"v_and_b32 v{vLane}, 63, v0")
    e(f"v_lshrrev_b32 v{vT0}, 6, v0")
    e("s_nop 0")
    e(f"v_readfirstlane_b32 s26, v{vT0}")
    e(f"v_lshrrev_b32 v{vH}, 5, v{vLane}")
    e("s_lshl_b32 s27, s25, 2")
    e("s_add_u32 s27, s27, s26")
    e("s_lshl_b32 s27, s27, 5")
    e("s_waitcnt lgkmcnt(0)")
    e("s_lshl_b32 s28, s24, 16")
    e("s_add_u32 s12, s8, s28")
    e("s_addc_u32 s13, s9, 0")
    e("s_and_b32 s13, s13, 0xffff")
    e("s_mov_b32 s14, 65536")
    e("s_mov_b32 s15, 0x00020000")
    e(f"s_add_u32 s16, s12, {32*65536}")
    e("s_addc_u32 s17, s13, 0")
    e("s_and_b32 s17, s17, 0xffff")
    e("s_mov_b32 s18, 65536")
    e("s_mov_b32 s19, 0x00020000")
    e(f"s_add_u32 s20, s12, {WS_VT}")
    e("s_addc_u32 s21, s13, 0")
    e("s_and_b32 s21, s21, 0xffff")
    e("s_mov_b32 s22, 65536")
    e("s_mov_b32 s23, 0x00020000")
    srd_off(e, 32, 8, 9, WS_O, S * D * 2)
    e(f"v_and_b32 v{vT0}, 31, v{vLane}")
    e(f"v_add_u32 v{vQi}, s27, v{vT0}")
    e(f"v_lshlrev_b32 v{vQoff}, 5, v{vQi}")
    e(f"v_lshlrev_b32 v{vT1}, 4, v{vH}")
    e(f"v_add_u32 v{vQoff}, v{vQoff}, v{vT1}")
    e(f"v_subrev_u32 v{vKoff}, {256*32}, v{vQoff}")
    e.vm('Q', f"buffer_load_dwordx4 v[{VQ}:{VQ+3}], v{vQoff}, s[12:15], 0 offen")
    for t in range(9):
        e(f"v_add_u32 v{VS+t}, {t*1024}, v{vKoff}")
    for t in range(9):
        e.vm(('K', t), f"buffer_load_dwordx4 v[{VK+4*t}:{VK+4*t+3}], v{VS+t}, s[16:19], 0 offen")
    e(f"v_and_b32 v{vT0}, 15, v{vLane}")
    e(f"v_lshlrev_b32 v{vVoff}, 12, v{vT0}")
    e(f"v_lshlrev_b32 v{vT1}, 3, v{vH}")
    e(f"v_add_u32 v{vVoff}, v{vVoff}, v{vT1}")
    e("s_lshl_b32 s28, s27, 1")
    e("s_sub_u32 s28, s28, 512")
    e(f"v_add_u32 v{vVoff}, s28, v{vVoff}")

    def issue_V(tiles, base):
        i = 0
        for t in tiles:
            va = (VS + 16 + t) if t < 7 else (13 + t - 7)
            e(f"v_add_u32 v{va}, {t*64}, v{vVoff}")
            for a in range(2):
                b = base + i * 4
                off = a * 32
                e.vm(('V', t), f"buffer_load_dwordx2 v[{b}:{b+1}], v{va}, s[20:23], 0 offen offset:{off}")
                e.vm(('V', t), f"buffer_load_dwordx2 v[{b+2}:{b+3}], v{va}, s[20:23], 0 offen offset:{off+16}")
                i += 1

    issue_V(range(0, 7), VV)
    e.vmwait(['Q', ('K', 0)])
    for t in range(9):
        e.vmwait([('K', t)])
        e(f"v_mfma_f32_32x32x16_bf16 v[{VS+16*t}:{VS+16*t+15}], v[{VK+4*t}:{VK+4*t+3}], v[{VQ}:{VQ+3}], 0")
    e("s_nop 15")
    e(f"v_and_b32 v{vT0}, 31, v{vLane}")
    e(f"v_lshlrev_b32 v{vT1}, 2, v{vH}")
    e(f"v_sub_u32 v{vT0}, v{vT0}, v{vT1}")
    e(f"v_mov_b32 v{vT2}, 0xff800000")
    for r in range(16):
        c = (r & 3) + 8 * (r >> 2)
        e(f"v_cmp_gt_i32 vcc, {c}, v{vT0}")
        e("s_nop 1")
        e(f"v_cndmask_b32 v{VS+r}, v{vT2}, v{VS+r}, vcc")
        e(f"v_cndmask_b32 v{VS+128+r}, v{VS+128+r}, v{vT2}, vcc")
    e("s_lshr_b32 s29, s27, 5")
    for t in range(8):
        e(f"s_cmp_ge_u32 s29, {8 - t}")
        e(f"s_cbranch_scc1 L_{name}_ok{t}")
        for r in range(16):
            e(f"v_mov_b32 v{VS+16*t+r}, v{vT2}")
        e.label(f"L_{name}_ok{t}")
    e(f"v_max3_f32 v{vMax}, v{VS}, v{VS+1}, v{VS+2}")
    i = 3
    while i + 1 < 144:
        e(f"v_max3_f32 v{vMax}, v{vMax}, v{VS+i}, v{VS+i+1}")
        i += 2
    e(f"v_max_f32 v{vMax}, v{vMax}, v{VS+143}")
    e(f"v_mov_b32 v{vT0}, v{vMax}")
    e("s_nop 1")
    e(f"v_permlane32_swap_b32 v{vMax}, v{vT0}")
    e("s_nop 1")
    e(f"v_max_f32 v{vMax}, v{vMax}, v{vT0}")
    c = 0.25 * 1.4426950408889634
    e(f"s_mov_b32 s30, {f2h(c)}")
    e(f"v_mul_f32 v{vMax}, s30, v{vMax}")
    e(f"v_mov_b32 v{vSumv}, 0")
    for i in range(144):
        e(f"v_fma_f32 v{VS+i}, v{VS+i}, s30, -v{vMax}")
        e(f"v_exp_f32 v{VS+i}, v{VS+i}")
    e("s_nop 0")
    for i in range(144):
        e(f"v_add_f32 v{vSumv}, v{vSumv}, v{VS+i}")
    e(f"v_mov_b32 v{vT0}, v{vSumv}")
    e("s_nop 1")
    e(f"v_permlane32_swap_b32 v{vSumv}, v{vT0}")
    e("s_nop 1")
    e(f"v_add_f32 v{vSumv}, v{vSumv}, v{vT0}")
    e(f"v_rcp_f32 v{vSumv}, v{vSumv}")
    e("s_nop 0")
    firstpv = True

    def pv(tiles, base):
        nonlocal firstpv
        i = 0
        for t in tiles:
            e.vmwait([('V', t)])
            for a in range(2):
                b = base + i * 4
                s0 = VS + 16 * t + 8 * a
                pb = VP + (i % 4) * 4
                for j in range(4):
                    e(f"v_mul_f32 v{s0+2*j}, v{vSumv}, v{s0+2*j}")
                    e(f"v_mul_f32 v{s0+2*j+1}, v{vSumv}, v{s0+2*j+1}")
                    e(f"v_cvt_pk_bf16_f32 v{pb+j}, v{s0+2*j}, v{s0+2*j+1}")
                e("s_nop 1")
                cc = "0" if firstpv else f"v[{VO}:{VO+15}]"
                e(f"v_mfma_f32_32x32x16_bf16 v[{VO}:{VO+15}], v[{b}:{b+3}], v[{pb}:{pb+3}], {cc}")
                firstpv = False
                i += 1

    pv(range(0, 5), VV)
    issue_V(range(7, 9), VV)
    pv(range(5, 7), VV + 40)
    pv(range(7, 9), VV)
    e("s_nop 15")
    e(f"v_cvt_pk_bf16_f32 v{VP}, v{VO}, v{VO+1}")
    e(f"v_cvt_pk_bf16_f32 v{VP+1}, v{VO+2}, v{VO+3}")
    e(f"v_cvt_pk_bf16_f32 v{VP+2}, v{VO+4}, v{VO+5}")
    e(f"v_cvt_pk_bf16_f32 v{VP+3}, v{VO+6}, v{VO+7}")
    e("s_nop 1")
    e(f"v_permlane32_swap_b32 v{VP}, v{VP+2}")
    e(f"v_permlane32_swap_b32 v{VP+1}, v{VP+3}")
    e("s_nop 1")
    e(f"v_lshlrev_b32 v{vT0}, 10, v{vQi}")
    e(f"v_lshlrev_b32 v{vT1}, 4, v{vH}")
    e(f"v_add_u32 v{vT0}, v{vT0}, v{vT1}")
    e("s_lshl_b32 s28, s24, 5")
    e(f"buffer_store_dwordx4 v[{VP}:{VP+3}], v{vT0}, s[32:35], s28 offen")
    e.label(endl)
    e("s_endpgm")
    e.vmq = []


def kd(name, vgpr=256):
    return f""".p2align 6
.amdhsa_kernel {name}
  .amdhsa_next_free_vgpr {vgpr}
  .amdhsa_next_free_sgpr 64
  .amdhsa_accum_offset {((vgpr+3)//4)*4}
  .amdhsa_group_segment_fixed_size 0
  .amdhsa_kernarg_size 72
  .amdhsa_user_sgpr_count 2
  .amdhsa_user_sgpr_kernarg_segment_ptr 1
  .amdhsa_system_sgpr_workgroup_id_x 1
.end_amdhsa_kernel
"""


def main():
    hdr = open(f"cdna_kernels/{NAME}.s.ref").read().split("; Override launch")[0]
    kernels = []
    body = ""
    names = {}
    for kind in ['qkv', 'attn', 'wo', 'w1', 'w2']:
        nm = f"k{kind}_kernel"
        e = Em()
        if kind == 'attn':
            attn_kernel(e, nm)
            lds = 0
            grid = 512
        else:
            lds = gemm_kernel(e, nm, kind)
            grid = {'qkv': 256, 'wo': 256, 'w1': 240, 'w2': 256}[kind]
        kernels.append((nm, grid, lds))
        body += f".globl {nm}\n.p2align 8\n.type {nm},@function\n" + e.text()
    out = hdr
    for nm, grid, lds in kernels:
        out += f"; @launch kernel={nm} grid=({grid},1,1) block=(256,1,1) lds={lds}\n"
    out += '.amdgcn_target "amdgcn-amd-amdhsa--gfx950"\n.text\n' + body
    out += '.section .rodata,"a"\n'
    for nm, grid, lds in kernels:
        out += kd(nm)
    open(sys.argv[1] if len(sys.argv) > 1 else f"cdna_kernels/{NAME}.s", "w").write(out)


main()
```

```python
import sys, struct

def f2h(x):
    return "0x%08x" % struct.unpack("<I", struct.pack("<f", x))[0]

import os
STAMP = os.environ.get("STAMP", "0") == "1"
NAME = "sequential_preLN__sliding_block__dense_activation_relu__prompt"
S = 2048
D = 512
DFF = 1376
MB = 1 << 20
WS_QK = 0
WS_VT = 4 * MB
WS_O = 8 * MB
WS_H = 12 * MB
WS_H1 = 16 * MB
WS_ST = 24 * MB
WS_SIZE = 32 * MB


class Em:
    def __init__(self):
        self.l = []
        self.vmq = []
        self.nst = 0

    def __call__(self, s):
        self.l.append("    " + s)

    def label(self, s):
        self.l.append(s + ":")

    def vm(self, tag, s):
        self.l.append("    " + s)
        self.vmq.append(tag)

    def vmwait(self, tags):
        idx = -1
        for i, t in enumerate(self.vmq):
            if t in tags:
                idx = i
        if idx < 0:
            return
        n = len(self.vmq) - idx - 1
        assert n <= 63
        self(f"s_waitcnt vmcnt({n})")
        self.vmq = self.vmq[idx + 1:]

    def stamp(self, who='c'):
        if not STAMP:
            return
        if (os.environ.get("LSTAMP") == "1") != (who == 'l') and who != 'b':
            return
        i = self.nst
        self.nst += 1
        assert i < 16
        self(f"s_memtime s[{64+2*i}:{65+2*i}]")
        self("s_waitcnt lgkmcnt(0)")

    def dump_stamps(self, lastwg, lastwave=15, firstwave=0):
        if not STAMP:
            return
        self("s_load_dwordx2 s[56:57], s[0:1], 56")
        self("s_waitcnt lgkmcnt(0)")
        self("s_mov_b32 s60, s56")
        self("s_and_b32 s61, s57, 0xffff")
        self("s_mov_b32 s62, 256")
        self("s_mov_b32 s63, 0x00020000")
        self("s_mov_b32 s58, 4096")
        self("s_cmp_eq_u32 s2, 0")
        self("s_cselect_b32 s59, 0, 4096")
        self(f"s_cmp_eq_u32 s26, {firstwave}")
        self("s_cselect_b32 s59, s59, 4096")
        self(f"s_cmp_eq_u32 s2, 0")
        self("s_cselect_b32 s58, 128, s58")
        self(f"s_cmp_eq_u32 s26, {lastwave}")
        self("s_cselect_b32 s58, s58, 4096")
        self("s_min_u32 s58, s58, s59")
        self("v_mov_b32 v2, s58")
        for i in range(self.nst):
            self(f"v_mov_b32 v0, s{64+2*i}")
            self(f"v_mov_b32 v1, s{65+2*i}")
            self(f"buffer_store_dwordx2 v[0:1], v2, s[60:63], 0 offen offset:{8*i}")
            self("s_waitcnt vmcnt(0)")

    def text(self):
        return "\n".join(self.l) + "\n"


def srd(e, d, lo, hi, size):
    e(f"s_mov_b32 s{d}, s{lo}")
    e(f"s_and_b32 s{d+1}, s{hi}, 0xffff")
    e(f"s_mov_b32 s{d+2}, {size}")
    e(f"s_mov_b32 s{d+3}, 0x00020000")


def srd_off(e, d, lo, hi, off, size):
    e(f"s_add_u32 s{d}, s{lo}, {off}")
    e(f"s_addc_u32 s{d+1}, s{hi}, 0")
    e(f"s_and_b32 s{d+1}, s{d+1}, 0xffff")
    e(f"s_mov_b32 s{d+2}, {size}")
    e(f"s_mov_b32 s{d+3}, 0x00020000")


def rne_bf16(e, v, tmp):
    e(f"v_cvt_pk_bf16_f32 v{tmp}, v{v}, v{v}")
    e(f"v_lshlrev_b32 v{v}, 16, v{tmp}")


def half_combine(e, v, tmp):
    e(f"v_mov_b32 v{tmp}, v{v}")
    e("s_nop 1")
    e(f"v_permlane32_swap_b32 v{v}, v{tmp}")
    e("s_nop 1")
    e(f"v_add_f32 v{v}, v{v}, v{tmp}")


def gemm_kernel(e, name, kind):
    cfg = {
        'qkv': dict(K=512, NT=3, RS=256, KC=64, ln=True, ldw=3072, wslot=8, nwg=256, NB=4),
        'wo': dict(K=512, NT=1, RS=128, KC=128, ln=False, ldw=1024, wslot=16, nwg=256, NB=2),
        'w1': dict(K=512, NT=3, RS=256, KC=64, ln=True, ldw=2752, wslot=32, nwg=240, NB=4),
        'w2': dict(K=1376, NT=1, RS=128, KC=128, ln=False, ldw=1024, wslot=40, nwg=256, NB=2),
    }[kind]
    K, NT, RS, KC, ln, ldw, NB = cfg['K'], cfg['NT'], cfg['RS'], cfg['KC'], cfg['ln'], cfg['ldw'], cfg['NB']
    nks = K // 16
    KS = KC // 16
    nst = (nks + KS - 1) // KS
    NSLOT = 4
    A_ST = 16384
    B_ST = 16384
    ST = A_ST + B_ST
    LDS_SCR = NSLOT * ST
    lds_total = LDS_SCR + 2048 + 8 * 384
    rows_per_dma = 1024 // RS
    vLane, vAoff, vBoff = 1, 2, 3
    vSum, vSq = 4, 5
    vCs = 6
    vT0, vT1, vT2, vT3 = 9, 10, 11, 12
    vH = 13
    vRow = 14
    vAoff2 = 15
    VB = 16
    VT = 40
    VE = 46
    VA = 52
    VAa = 60
    VACC = 64
    VR = 112
    VRES = 112
    nvgpr = 160
    endl = f"L_{name}_end"

    e.label(name)
    e(f"s_cmp_ge_u32 s2, {cfg['nwg']}")
    e(f"s_cbranch_scc1 {endl}")
    e.stamp('b')
    e("s_load_dwordx2 s[4:5], s[0:1], 0")
    e(f"s_load_dwordx2 s[6:7], s[0:1], {cfg['wslot']}")
    e("s_load_dwordx4 s[8:11], s[0:1], 56")
    e("s_load_dwordx2 s[54:55], s[0:1], 48")
    e("s_and_b32 s24, s2, 7")
    e("s_lshr_b32 s25, s2, 3")
    if NB == 4:
        e("s_and_b32 s26, s25, 1")
        e("s_lshl_b32 s24, s24, 1")
        e("s_add_u32 s24, s24, s26")
        e("s_lshr_b32 s25, s25, 1")
        e("s_lshl_b32 s50, s24, 2")
    else:
        e("s_and_b32 s26, s25, 3")
        e("s_lshl_b32 s24, s24, 2")
        e("s_add_u32 s24, s24, s26")
        e("s_lshr_b32 s25, s25, 2")
        e("s_lshl_b32 s50, s24, 1")
    e(f"v_and_b32 v{vLane}, 63, v0")
    e(f"v_lshrrev_b32 v{vT0}, 6, v0")
    e("s_nop 0")
    e(f"v_readfirstlane_b32 s26, v{vT0}")
    e(f"v_lshrrev_b32 v{vH}, 5, v{vLane}")
    e("s_and_b32 s48, s26, 3")
    e("s_lshr_b32 s57, s26, 2")
    e("s_cmp_ge_u32 s26, 8")
    e(f"s_cbranch_scc1 L_{name}_compute")

    if RS == 256:
        e(f"v_lshrrev_b32 v{vT0}, 4, v{vLane}")
        e(f"v_and_b32 v{vT1}, 15, v{vLane}")
        e(f"v_lshlrev_b32 v{vT2}, 2, v{vT0}")
        e(f"v_xor_b32 v{vT1}, v{vT1}, v{vT2}")
        e(f"s_mov_b32 s36, {ldw}")
        e(f"v_mul_lo_u32 v{vBoff}, v{vT0}, s36")
        if kind == 'qkv':
            e("s_lshl_b32 s36, s25, 7")
            e("s_lshl_b32 s37, s25, 6")
            e("s_add_u32 s37, s37, 2048")
            e(f"v_lshlrev_b32 v{vT2}, 4, v{vT1}")
            e(f"v_add_u32 v{vT2}, s36, v{vT2}")
            e(f"v_and_b32 v{vT3}, 3, v{vT1}")
            e(f"v_lshlrev_b32 v{vT3}, 4, v{vT3}")
            e(f"v_add_u32 v{vT3}, s37, v{vT3}")
            e(f"v_cmp_gt_u32 vcc, 8, v{vT1}")
            e("s_nop 1")
            e(f"v_cndmask_b32 v{vT2}, v{vT3}, v{vT2}, vcc")
            e(f"v_add_u32 v{vBoff}, v{vBoff}, v{vT2}")
        else:
            e("s_mul_i32 s36, s25, 192")
            e(f"v_lshlrev_b32 v{vT2}, 4, v{vT1}")
            e(f"v_add_u32 v{vT2}, s36, v{vT2}")
            e(f"v_add_u32 v{vBoff}, v{vBoff}, v{vT2}")
        e(f"v_cmp_gt_u32 vcc, 12, v{vT1}")
        e("s_mov_b64 s[38:39], vcc")
    else:
        e(f"v_lshrrev_b32 v{vT0}, 3, v{vLane}")
        e(f"v_and_b32 v{vT1}, 7, v{vLane}")
        e(f"v_bfe_u32 v{vT2}, v{vLane}, 4, 1")
        e(f"v_lshlrev_b32 v{vT2}, 2, v{vT2}")
        e(f"v_xor_b32 v{vT1}, v{vT1}, v{vT2}")
        e(f"v_lshlrev_b32 v{vBoff}, 10, v{vT0}")
        e("s_lshl_b32 s36, s25, 7")
        e(f"v_lshlrev_b32 v{vT2}, 4, v{vT1}")
        e(f"v_add_u32 v{vT2}, s36, v{vT2}")
        e(f"v_add_u32 v{vBoff}, v{vBoff}, v{vT2}")
    if kind == 'qkv':
        e(f"v_lshrrev_b32 v{vT0}, 3, v{vLane}")
        e(f"v_lshrrev_b32 v{vT1}, 4, v{vLane}")
        e(f"v_and_b32 v{vT2}, 7, v{vLane}")
        e(f"v_xor_b32 v{vT3}, v{vT2}, v{vT1}")
        e(f"v_lshlrev_b32 v{vT3}, 4, v{vT3}")
        e(f"v_lshlrev_b32 v{vAoff}, 10, v{vT0}")
        e(f"v_add_u32 v{vAoff2}, 4, v{vT1}")
        e(f"v_xor_b32 v{vAoff2}, v{vT2}, v{vAoff2}")
        e(f"v_lshlrev_b32 v{vAoff2}, 4, v{vAoff2}")
        e(f"v_add_u32 v{vAoff2}, v{vAoff2}, v{vAoff}")
        e(f"v_add_u32 v{vAoff}, v{vAoff}, v{vT3}")
        e("s_lshl_b32 s51, s24, 17")
        e("s_lshl_b32 s52, s48, 15")
        e("s_add_u32 s51, s51, s52")
    else:
        e(f"v_lshlrev_b32 v{vAoff}, 4, v{vLane}")
        if NB == 4:
            e("s_add_u32 s51, s50, s48")
            e(f"s_mul_i32 s51, s51, {nks*1024}")
        else:
            e("s_lshr_b32 s52, s48, 1")
            e("s_add_u32 s51, s50, s52")
            e(f"s_mul_i32 s51, s51, {nks*1024}")
            e("s_and_b32 s52, s48, 1")
            e("s_lshl_b32 s52, s52, 12")
            e("s_add_u32 s51, s51, s52")
    e("s_lshl_b32 s53, s48, 12")
    e(f"s_mul_i32 s43, s48, {4*rows_per_dma*ldw}")
    e("s_waitcnt lgkmcnt(0)")
    srd(e, 16, 6, 7, K * ldw)
    if kind == 'qkv':
        srd(e, 12, 4, 5, S * D * 2)
    elif kind == 'wo':
        srd_off(e, 12, 10, 11, WS_O, S * D * 2)
    elif kind == 'w1':
        srd_off(e, 12, 10, 11, WS_H, S * D * 2)
    else:
        srd_off(e, 12, 10, 11, WS_H1, S * DFF * 2)

    e("s_lshl_b32 s58, s57, 11")
    e("s_add_u32 s53, s53, s58")
    if kind == 'qkv':
        e("s_lshl_b32 s59, s57, 14")
    else:
        e("s_lshl_b32 s59, s57, 11")
    e("s_add_u32 s51, s51, s59")
    e(f"s_mul_i32 s59, s57, {2*rows_per_dma*ldw}")
    e("s_add_u32 s43, s43, s59")

    def ld_issue(c):
        slot = c % NSLOT
        for i in range(2):
            e(f"s_add_u32 s44, s53, {slot*ST + i*1024}")
            e("s_mov_b32 m0, s44")
            if kind == 'qkv':
                e(f"s_add_u32 s45, s51, {c*KC*2 + i*8*1024}")
                va = vAoff if i % 2 == 0 else vAoff2
            else:
                e(f"s_add_u32 s45, s51, {c*KS*1024 + i*1024}")
                va = vAoff
            e.vm(('L', c), f"buffer_load_dwordx4 v{va}, s[12:15], s45 offen lds")
        if RS == 256:
            e("s_mov_b64 exec, s[38:39]")
        for i in range(2):
            e(f"s_add_u32 s44, s53, {slot*ST + A_ST + i*1024}")
            e("s_mov_b32 m0, s44")
            e(f"s_add_u32 s45, s43, {(c*KC + i*rows_per_dma)*ldw}")
            e.vm(('L', c), f"buffer_load_dwordx4 v{vBoff}, s[16:19], s45 offen lds")
        if RS == 256:
            e("s_mov_b64 exec, -1")

    if ln:
        e(f"v_lshrrev_b32 v{vT0}, 2, v{vLane}")
        e(f"v_and_b32 v{vT0}, 3, v{vT0}")
        e(f"v_lshlrev_b32 v{vT1}, 3, v{vH}")
        e(f"v_add_u32 v{vT1}, v{vT1}, v{vT0}")
        e(f"v_lshlrev_b32 v{vT1}, 8, v{vT1}")
        e(f"v_lshrrev_b32 v{vT2}, 4, v{vLane}")
        e(f"v_and_b32 v{vT2}, 1, v{vT2}")
        e(f"v_lshlrev_b32 v{vT2}, 5, v{vT2}")
        e(f"v_and_b32 v{vT3}, 3, v{vLane}")
        e(f"v_lshlrev_b32 v{vT3}, 3, v{vT3}")
        e(f"v_add_u32 v{vT1}, v{vT1}, v{vT2}")
        e(f"v_add_u32 v{vT1}, v{vT1}, v{vT3}")
        e("s_lshl_b32 s36, s48, 12")
        e(f"v_add_u32 v{vT1}, s36, v{vT1}")
        for t in range(NT):
            e(f"v_xor_b32 v{vT2}, {t}, v{vT0}")
            e(f"v_lshlrev_b32 v{vT2}, 6, v{vT2}")
            e(f"v_add_u32 v{VT+t}, v{vT1}, v{vT2}")
            e(f"v_add_u32 v{VT+3+t}, {2*ST}, v{VT+t}")
            e(f"v_mov_b32 v{vCs+t}, 0")
        e("s_mov_b32 s40, 0x3f803f80")
    e.stamp('l')
    for c in range(min(NSLOT - 1, nst)):
        ld_issue(c)
        e.stamp('l')
        if c < NSLOT - 2:
            e("s_barrier")
    for c in range(nst):
        e.vmwait([('L', c)])
        if c < 4:
            e.stamp('l')
        e("s_barrier")
        if c < 4:
            e.stamp('l')
        if c + NSLOT - 1 < nst:
            ld_issue(c + NSLOT - 1)
        if ln:
            slot = c % NSLOT
            e(f"s_cmp_lg_u32 s57, {c & 1}")
            e(f"s_cbranch_scc1 L_{name}_nocs{c}")
            for t in range(NT):
                vt = VT + t + (3 if slot >= 2 else 0)
                off = (slot % 2) * ST + A_ST
                bb = VB + t * 4
                e(f"ds_read_b64_tr_b16 v[{bb}:{bb+1}], v{vt} offset:{off}")
                e(f"ds_read_b64_tr_b16 v[{bb+2}:{bb+3}], v{vt} offset:{off + 4*RS}")
            e("s_waitcnt lgkmcnt(0)")
            for t in range(NT):
                bb = VB + t * 4
                for j in range(4):
                    e(f"v_dot2_f32_bf16 v{vCs+t}, v{bb+j}, s40, v{vCs+t}")
            e.label(f"L_{name}_nocs{c}")
    if ln:
        e("s_nop 2")
        for t in range(NT):
            half_combine(e, vCs + t, vT0)
        e(f"v_and_b32 v{vT0}, 31, v{vLane}")
        e(f"v_lshlrev_b32 v{vT0}, 2, v{vT0}")
        e(f"s_mul_i32 s36, s26, 384")
        e(f"s_add_u32 s36, s36, {LDS_SCR + 2048}")
        e(f"v_add_u32 v{vT1}, s36, v{vT0}")
        for t in range(NT):
            e(f"ds_write_b32 v{vT1}, v{vCs+t} offset:{t*128}")
        e("s_waitcnt lgkmcnt(0)")
        e("s_barrier")
    if os.environ.get("LSTAMP") == "1":
        e.dump_stamps(cfg['nwg'] - 1, 7, 0)
    e(f"s_branch {endl}")
    e.vmq = []

    e.label(f"L_{name}_compute")
    if NB == 4:
        e("s_add_u32 s50, s50, s48")
        e("s_mov_b32 s49, 0")
        e("s_mov_b32 s42, s48")
    else:
        e("s_and_b32 s42, s48, 1")
        e("s_add_u32 s50, s50, s42")
        e("s_lshr_b32 s49, s48, 1")
    e("s_lshl_b32 s27, s50, 5")
    e(f"v_and_b32 v{vT0}, 31, v{vLane}")
    e(f"v_add_u32 v{vRow}, s27, v{vT0}")
    if kind == 'qkv':
        e(f"v_lshrrev_b32 v{vT1}, 1, v{vT0}")
        e(f"v_and_b32 v{vT1}, 7, v{vT1}")
        e(f"v_lshlrev_b32 v{vT2}, 7, v{vT0}")
        e("s_lshl_b32 s36, s42, 12")
        e(f"v_add_u32 v{vT2}, s36, v{vT2}")
        for s_ in range(4):
            e(f"v_xor_b32 v{vT3}, {2*s_}, v{vT1}")
            e(f"v_xor_b32 v{vT3}, v{vT3}, v{vH}")
            e(f"v_lshlrev_b32 v{vT3}, 4, v{vT3}")
            e(f"v_add_u32 v{VR+s_}, v{vT2}, v{vT3}")
        VAq = VR + 36
        for s_ in range(4):
            e(f"v_mov_b32 v{VAq+s_}, v{VR+s_}")
            e(f"v_add_u32 v{VAq-4+s_}, {2*ST}, v{VR+s_}")
    else:
        e(f"v_lshlrev_b32 v{VAa}, 4, v{vLane}")
        e(f"s_mul_i32 s36, s42, {KS*1024}")
        e(f"v_add_u32 v{VAa}, s36, v{VAa}")
    e(f"v_lshrrev_b32 v{vT0}, 2, v{vLane}")
    e(f"v_and_b32 v{vT0}, 3, v{vT0}")
    e(f"v_lshlrev_b32 v{vT1}, 3, v{vH}")
    e(f"v_add_u32 v{vT1}, v{vT1}, v{vT0}")
    e(f"v_lshlrev_b32 v{vT1}, {RS.bit_length()-1}, v{vT1}")
    e(f"v_lshrrev_b32 v{vT2}, 4, v{vLane}")
    e(f"v_and_b32 v{vT2}, 1, v{vT2}")
    e(f"v_lshlrev_b32 v{vT2}, 5, v{vT2}")
    e(f"v_and_b32 v{vT3}, 3, v{vLane}")
    e(f"v_lshlrev_b32 v{vT3}, 3, v{vT3}")
    e(f"v_add_u32 v{vT1}, v{vT1}, v{vT2}")
    e(f"v_add_u32 v{vT1}, v{vT1}, v{vT3}")
    if RS == 256:
        for t in range(NT):
            e(f"v_xor_b32 v{vT2}, {t}, v{vT0}")
            e(f"v_lshlrev_b32 v{vT2}, 6, v{vT2}")
            e(f"v_add_u32 v{VT+t}, v{vT1}, v{vT2}")
            e(f"v_add_u32 v{VT+3+t}, {2*ST}, v{VT+t}")
    else:
        e(f"v_lshrrev_b32 v{vT2}, 1, v{vT0}")
        e(f"v_xor_b32 v{vT2}, s49, v{vT2}")
        e(f"v_lshlrev_b32 v{vT2}, 6, v{vT2}")
        e(f"v_add_u32 v{VT}, v{vT1}, v{vT2}")
        e(f"v_add_u32 v{VT+3}, {2*ST}, v{VT}")
    e(f"v_add_u32 v{VAa+1}, {2*ST}, v{VAa}")
    e("s_mov_b32 s40, 0x3f803f80")
    if ln:
        e(f"v_mov_b32 v{vSum}, 0")
        e(f"v_mov_b32 v{vSq}, 0")
    e("s_waitcnt lgkmcnt(0)")
    srd(e, 20, 10, 11, WS_SIZE)
    if kind == 'wo':
        srd(e, 28, 4, 5, S * D * 2)
        srd_off(e, 32, 10, 11, WS_H, S * D * 2)
    elif kind == 'w2':
        srd_off(e, 28, 10, 11, WS_H, S * D * 2)
        srd(e, 32, 54, 55, S * D * 2)
    elif kind == 'w1':
        srd_off(e, 32, 10, 11, WS_H1, S * DFF * 2)
    if kind in ('wo', 'w2'):
        e("s_lshl_b32 s37, s25, 1")
        e("s_add_u32 s37, s37, s49")
        e("s_lshl_b32 s36, s50, 15")
        e("s_lshl_b32 s41, s37, 11")
        e("s_add_u32 s36, s36, s41")
        fm, rm = (VE + 1, VE) if kind == 'wo' else (VE, VE + 1)
        e(f"v_lshlrev_b32 v{fm}, 4, v{vLane}")
        e(f"v_add_u32 v{fm}, s36, v{fm}")
        e(f"v_lshlrev_b32 v{vT0}, 10, v{vRow}")
        e(f"v_lshlrev_b32 v{vT1}, 4, v{vH}")
        e(f"v_add_u32 v{vT0}, v{vT0}, v{vT1}")
        e("s_lshl_b32 s36, s37, 6")
        e(f"v_add_u32 v{rm}, s36, v{vT0}")
        e.vm('R', f"buffer_load_dwordx4 v[{VRES}:{VRES+3}], v{VE}, s[28:31], 0 offen")
        e.vm('R', f"buffer_load_dwordx4 v[{VRES+4}:{VRES+7}], v{VE}, s[28:31], 0 offen offset:{32 if kind=='wo' else 1024}")
    e.stamp()

    def forms(t):
        return 'N' if (kind == 'qkv' and t == 2) else 'T'

    def frag_reads(c, s_, buf):
        slot = c % NSLOT
        hi = 3 if slot >= 2 else 0
        lo = (slot % 2) * ST
        if kind == 'qkv':
            va = VR + 36 + s_ - (4 if slot >= 2 else 0)
            e(f"ds_read_b128 v[{VA+buf*4}:{VA+buf*4+3}], v{va} offset:{lo}")
        else:
            va = VAa + (1 if slot >= 2 else 0)
            e(f"ds_read_b128 v[{VA+buf*4}:{VA+buf*4+3}], v{va} offset:{lo + s_*1024}")
        for t in range(NT):
            bb = VB + buf * NT * 4 + t * 4
            off = lo + A_ST + s_ * 16 * RS
            e(f"ds_read_b64_tr_b16 v[{bb}:{bb+1}], v{VT+hi+t} offset:{off}")
            e(f"ds_read_b64_tr_b16 v[{bb+2}:{bb+3}], v{VT+hi+t} offset:{off + 4*RS}")

    first = True
    nrd = 2 * NT + 1
    e("s_barrier")
    e("s_barrier")
    for c in range(nst):
        ns = min(KS, nks - c * KS)
        e("s_barrier")
        if c < 3:
            e.stamp()
        frag_reads(c, 0, 0)
        for s_ in range(ns):
            buf = s_ & 1
            if s_ + 1 < ns:
                frag_reads(c, s_ + 1, buf ^ 1)
                e(f"s_waitcnt lgkmcnt({nrd})")
            else:
                e("s_waitcnt lgkmcnt(0)")
            a = VA + buf * 4
            for t in range(NT):
                bb = VB + buf * NT * 4 + t * 4
                acc = VACC + t * 16
                cc = "0" if first else f"v[{acc}:{acc+15}]"
                if forms(t) == 'T':
                    e(f"v_mfma_f32_32x32x16_bf16 v[{acc}:{acc+15}], v[{bb}:{bb+3}], v[{a}:{a+3}], {cc}")
                else:
                    e(f"v_mfma_f32_32x32x16_bf16 v[{acc}:{acc+15}], v[{a}:{a+3}], v[{bb}:{bb+3}], {cc}")
                if ln:
                    if t == 0:
                        for j in range(4):
                            e(f"v_dot2_f32_bf16 v{vSum}, v{a+j}, s40, v{vSum}")
                    if t == 1:
                        for j in range(4):
                            e(f"v_dot2_f32_bf16 v{vSq}, v{a+j}, v{a+j}, v{vSq}")
            first = False
    e.stamp()
    e("s_nop 7")
    if ln:
        e("s_barrier")
        half_combine(e, vSum, vT0)
        half_combine(e, vSq, vT0)
        e(f"v_mul_f32 v{vSum}, {f2h(1.0/512)}, v{vSum}")
        e(f"v_mul_f32 v{vSq}, {f2h(1.0/512)}, v{vSq}")
        e(f"v_fma_f32 v{vSq}, -v{vSum}, v{vSum}, v{vSq}")
        e(f"v_max_f32 v{vSq}, 0, v{vSq}")
        rne_bf16(e, vSum, vT0)
        rne_bf16(e, vSq, vT0)
        e(f"v_add_f32 v{vSq}, 0x3727c5ac, v{vSq}")
        rne_bf16(e, vSq, vT0)
        e(f"v_sqrt_f32 v{vSq}, v{vSq}")
        e("s_nop 0")
        rne_bf16(e, vSq, vT0)
        e(f"v_rcp_f32 v{vSq}, v{vSq}")
        e("s_nop 0")
        e(f"v_sub_f32 v{VE}, 0, v{vSum}")
        e(f"v_mov_b32 v{VE+1}, v{VE}")
        e(f"v_mov_b32 v{VE+2}, v{vSq}")
        e(f"v_mov_b32 v{VE+3}, v{vSq}")
        e(f"v_and_b32 v{vT0}, 31, v{vLane}")
        e(f"v_lshlrev_b32 v{vT0}, 2, v{vT0}")
        e(f"v_add_u32 v{vT1}, {LDS_SCR + 2048}, v{vT0}")
        for jj in range(8):
            for t in range(NT):
                e(f"ds_read_b32 v{VR+jj*3+t}, v{vT1} offset:{jj*384 + t*128}")
        e("s_waitcnt lgkmcnt(0)")
        for t in range(NT):
            e(f"v_add_f32 v{vCs+t}, v{VR+t}, v{VR+3+t}")
            for jj in range(2, 8):
                e(f"v_add_f32 v{vCs+t}, v{vCs+t}, v{VR+jj*3+t}")
        e(f"s_lshl_b32 s47, s48, 9")
        e(f"s_add_u32 s47, s47, {LDS_SCR}")
        e(f"v_add_u32 v{vT1}, s47, v{vT0}")
        nT = 2 if kind == 'qkv' else 3
        for t in range(nT):
            e(f"ds_write_b32 v{vT1}, v{vCs+t} offset:{t*128}")
        if kind == 'qkv':
            e(f"ds_write_b32 v{vT1}, v{vSum} offset:256")
            e(f"ds_write_b32 v{vT1}, v{vSq} offset:384")
        e(f"v_lshlrev_b32 v{vT1}, 4, v{vH}")
        e(f"v_add_u32 v{vT1}, s47, v{vT1}")
        e("s_waitcnt lgkmcnt(0)")
        for t in range(nT):
            for q in range(4):
                e(f"ds_read_b128 v[{VR+t*16+q*4}:{VR+t*16+q*4+3}], v{vT1} offset:{t*128 + q*32}")
        e("s_waitcnt lgkmcnt(0)")
    e.stamp()
    for t in range(NT):
        acc = VACC + t * 16
        if forms(t) == 'T':
            if ln:
                for j in range(0, 16, 2):
                    e(f"v_pk_fma_f32 v[{acc+j}:{acc+j+1}], v[{VR+t*16+j}:{VR+t*16+j+1}], v[{VE}:{VE+1}], v[{acc+j}:{acc+j+1}]")
                    e(f"v_pk_mul_f32 v[{acc+j}:{acc+j+1}], v[{acc+j}:{acc+j+1}], v[{VE+2}:{VE+3}]")
            for q in range(4):
                e(f"v_cvt_pk_bf16_f32 v{acc+2*q}, v{acc+4*q}, v{acc+4*q+1}")
                e(f"v_cvt_pk_bf16_f32 v{acc+2*q+1}, v{acc+4*q+2}, v{acc+4*q+3}")
            if kind == 'w1':
                for j in range(8):
                    e(f"v_pk_max_i16 v{acc+j}, v{acc+j}, 0")
            e("s_nop 1")
            for pr in range(2):
                e(f"v_permlane32_swap_b32 v{acc+4*pr}, v{acc+4*pr+2}")
                e(f"v_permlane32_swap_b32 v{acc+4*pr+1}, v{acc+4*pr+3}")
            e("s_nop 1")
            if kind == 'qkv':
                if t == 0:
                    e(f"v_lshlrev_b32 v{vT2}, 5, v{vRow}")
                    e(f"v_lshlrev_b32 v{vT3}, 4, v{vH}")
                    e(f"v_add_u32 v{vT2}, v{vT2}, v{vT3}")
                e(f"s_lshl_b32 s36, s25, 2")
                e(f"s_add_u32 s36, s36, {2*t}")
                e(f"s_lshl_b32 s36, s36, 16")
                e(f"s_add_u32 s37, s36, 65536")
                e(f"buffer_store_dwordx4 v[{acc}:{acc+3}], v{vT2}, s[20:23], s36 offen")
                e(f"buffer_store_dwordx4 v[{acc+4}:{acc+7}], v{vT2}, s[20:23], s37 offen")
            elif kind == 'w1':
                e(f"s_mul_i32 s36, s25, 3")
                e(f"s_add_u32 s36, s36, {t}")
                e(f"s_cmp_ge_u32 s36, 43")
                e(f"s_cbranch_scc1 L_{name}_skip{t}")
                e(f"s_lshl_b32 s36, s36, 11")
                e(f"s_mul_i32 s37, s50, {86*1024}")
                e(f"s_add_u32 s36, s36, s37")
                e(f"v_lshlrev_b32 v{vT2}, 4, v{vLane}")
                e(f"buffer_store_dwordx4 v[{acc}:{acc+3}], v{vT2}, s[32:35], s36 offen")
                e(f"buffer_store_dwordx4 v[{acc+4}:{acc+7}], v{vT2}, s[32:35], s36 offen offset:1024")
                e.label(f"L_{name}_skip{t}")
            else:
                e.vmwait(['R'])
                for j in range(8):
                    a_ = acc + j
                    r_ = VRES + j
                    e(f"v_lshlrev_b32 v{vT0}, 16, v{a_}")
                    e(f"v_and_b32 v{vT1}, 0xffff0000, v{a_}")
                    e(f"v_lshlrev_b32 v{vT2}, 16, v{r_}")
                    e(f"v_and_b32 v{vT3}, 0xffff0000, v{r_}")
                    e(f"v_add_f32 v{vT0}, v{vT0}, v{vT2}")
                    e(f"v_add_f32 v{vT1}, v{vT1}, v{vT3}")
                    e(f"v_cvt_pk_bf16_f32 v{a_}, v{vT0}, v{vT1}")
                o2 = 1024 if kind == 'wo' else 32
                e(f"buffer_store_dwordx4 v[{acc}:{acc+3}], v{VE+1}, s[32:35], 0 offen")
                e(f"buffer_store_dwordx4 v[{acc+4}:{acc+7}], v{VE+1}, s[32:35], 0 offen offset:{o2}")
        else:
            for q in range(4):
                e(f"ds_read_b128 v[{VR+q*4}:{VR+q*4+3}], v{vT1} offset:{256 + q*32}")
                e(f"ds_read_b128 v[{VR+16+q*4}:{VR+16+q*4+3}], v{vT1} offset:{384 + q*32}")
            e("s_waitcnt lgkmcnt(0)")
            for j in range(16):
                e(f"v_fma_f32 v{acc+j}, -v{VR+j}, v{vCs+t}, v{acc+j}")
                e(f"v_mul_f32 v{acc+j}, v{VR+16+j}, v{acc+j}")
            for q in range(4):
                e(f"v_cvt_pk_bf16_f32 v{acc+2*q}, v{acc+4*q}, v{acc+4*q+1}")
                e(f"v_cvt_pk_bf16_f32 v{acc+2*q+1}, v{acc+4*q+2}, v{acc+4*q+3}")
            e(f"v_and_b32 v{vT2}, 15, v{vLane}")
            e(f"v_lshlrev_b32 v{vT2}, 5, v{vT2}")
            e(f"v_lshlrev_b32 v{vT3}, 4, v{vH}")
            e(f"v_add_u32 v{vT2}, v{vT2}, v{vT3}")
            e(f"v_bfe_u32 v{vT3}, v{vLane}, 4, 1")
            e(f"v_lshlrev_b32 v{vT3}, 16, v{vT3}")
            e(f"v_add_u32 v{vT2}, v{vT2}, v{vT3}")
            e(f"s_lshl_b32 s36, s25, 17")
            e(f"s_lshl_b32 s37, s27, 5")
            e(f"s_add_u32 s36, s36, s37")
            e(f"s_add_u32 s36, s36, {WS_VT}")
            e(f"buffer_store_dwordx4 v[{acc}:{acc+3}], v{vT2}, s[20:23], s36 offen")
            e(f"buffer_store_dwordx4 v[{acc+4}:{acc+7}], v{vT2}, s[20:23], s36 offen offset:512")
    e.stamp()
    e("s_waitcnt vmcnt(0)")
    e.stamp()
    if os.environ.get("LSTAMP") != "1":
        e.dump_stamps(cfg['nwg'] - 1, 11, 8)
    e.label(endl)
    e("s_endpgm")
    e.vmq = []
    return lds_total, nvgpr


def attn_kernel(e, name):
    endl = f"L_{name}_end"
    vLane, vH, vT0, vT1, vT2, vT3 = 1, 2, 3, 4, 5, 6
    vQoff, vKa, vVa = 7, 8, 9
    vMax, vSumv = 10, 11
    vQi = 12
    VQ = 16
    VK = 20
    VS = 56
    VV = 200
    VO = 20
    VP = 36
    LK = 0
    LV = 16384
    e.label(name)
    e("s_cmp_ge_u32 s2, 256")
    e(f"s_cbranch_scc1 {endl}")
    e.stamp()
    e("s_load_dwordx2 s[8:9], s[0:1], 64")
    e("s_and_b32 s24, s2, 7")
    e("s_lshl_b32 s24, s24, 2")
    e("s_lshr_b32 s25, s2, 3")
    e("s_and_b32 s26, s25, 3")
    e("s_add_u32 s24, s24, s26")
    e("s_lshr_b32 s25, s2, 5")
    e(f"v_and_b32 v{vLane}, 63, v0")
    e(f"v_lshrrev_b32 v{vT0}, 6, v0")
    e("s_nop 0")
    e(f"v_readfirstlane_b32 s26, v{vT0}")
    e(f"v_lshrrev_b32 v{vH}, 5, v{vLane}")
    e("s_lshl_b32 s27, s25, 3")
    e("s_add_u32 s27, s27, s26")
    e("s_mov_b32 s29, s27")
    e("s_lshl_b32 s27, s27, 5")
    e("s_waitcnt lgkmcnt(0)")
    e("s_lshl_b32 s28, s24, 16")
    e("s_add_u32 s12, s8, s28")
    e("s_addc_u32 s13, s9, 0")
    e("s_and_b32 s13, s13, 0xffff")
    e("s_mov_b32 s14, 65536")
    e("s_mov_b32 s15, 0x00020000")
    e(f"s_add_u32 s16, s12, {32*65536}")
    e("s_addc_u32 s17, s13, 0")
    e("s_and_b32 s17, s17, 0xffff")
    e("s_mov_b32 s18, 65536")
    e("s_mov_b32 s19, 0x00020000")
    e(f"s_add_u32 s20, s12, {WS_VT}")
    e("s_addc_u32 s21, s13, 0")
    e("s_and_b32 s21, s21, 0xffff")
    e("s_mov_b32 s22, 65536")
    e("s_mov_b32 s23, 0x00020000")
    srd_off(e, 32, 8, 9, WS_O, S * D * 2)
    e(f"v_lshlrev_b32 v{vT0}, 4, v{vLane}")
    e("s_lshl_b32 s30, s25, 13")
    e("s_sub_u32 s30, s30, 8192")
    e("s_lshl_b32 s31, s26, 11")
    e("s_add_u32 s30, s30, s31")
    e(f"v_add_u32 v{vT1}, s30, v{vT0}")
    e(f"v_add_u32 v{vT2}, 1024, v{vT1}")
    e("s_mov_b32 m0, s31")
    e("s_nop 0")
    e.vm('L', f"buffer_load_dwordx4 v{vT1}, s[16:19], 0 offen lds")
    e("s_add_u32 s36, s31, 1024")
    e("s_mov_b32 m0, s36")
    e("s_nop 0")
    e.vm('L', f"buffer_load_dwordx4 v{vT2}, s[16:19], 0 offen lds")
    e(f"s_add_u32 s36, s31, {LV}")
    e("s_mov_b32 m0, s36")
    e("s_nop 0")
    e.vm('L', f"buffer_load_dwordx4 v{vT1}, s[20:23], 0 offen lds")
    e(f"s_add_u32 s36, s31, {LV+1024}")
    e("s_mov_b32 m0, s36")
    e("s_nop 0")
    e.vm('L', f"buffer_load_dwordx4 v{vT2}, s[20:23], 0 offen lds")
    e(f"v_and_b32 v{vT0}, 31, v{vLane}")
    e(f"v_add_u32 v{vQi}, s27, v{vT0}")
    e(f"v_lshlrev_b32 v{vQoff}, 5, v{vQi}")
    e(f"v_lshlrev_b32 v{vT1}, 4, v{vH}")
    e(f"v_add_u32 v{vQoff}, v{vQoff}, v{vT1}")
    e.vm('L', f"buffer_load_dwordx4 v[{VQ}:{VQ+3}], v{vQoff}, s[12:15], 0 offen")
    e(f"v_lshlrev_b32 v{vKa}, 5, v{vT0}")
    e(f"v_add_u32 v{vKa}, v{vKa}, v{vT1}")
    e("s_lshl_b32 s36, s26, 10")
    e(f"v_add_u32 v{vKa}, s36, v{vKa}")
    e(f"v_and_b32 v{vT0}, 15, v{vLane}")
    e(f"v_lshlrev_b32 v{vVa}, 5, v{vT0}")
    e(f"v_add_u32 v{vVa}, v{vVa}, v{vT1}")
    e(f"s_add_u32 s36, s36, {LV}")
    e(f"v_add_u32 v{vVa}, s36, v{vVa}")
    e.stamp()
    e.vmwait(['L'])
    e("s_barrier")
    e.stamp()
    for t in range(9):
        e(f"ds_read_b128 v[{VK+4*t}:{VK+4*t+3}], v{vKa} offset:{t*1024}")
    for t in range(9):
        e(f"s_waitcnt lgkmcnt({8-t})")
        e(f"v_mfma_f32_32x32x16_bf16 v[{VS+16*t}:{VS+16*t+15}], v[{VK+4*t}:{VK+4*t+3}], v[{VQ}:{VQ+3}], 0")
    for i in range(8):
        e(f"ds_read_b128 v[{VV+4*i}:{VV+4*i+3}], v{vVa} offset:{i*512}")
    e("s_nop 15")
    e.stamp()
    e(f"v_and_b32 v{vT0}, 31, v{vLane}")
    e(f"v_lshlrev_b32 v{vT1}, 2, v{vH}")
    e(f"v_sub_u32 v{vT0}, v{vT0}, v{vT1}")
    e(f"v_mov_b32 v{vT2}, 0xff800000")
    for r in range(16):
        c = (r & 3) + 8 * (r >> 2)
        e(f"v_cmp_gt_i32 vcc, {c}, v{vT0}")
        e("s_nop 1")
        e(f"v_cndmask_b32 v{VS+r}, v{vT2}, v{VS+r}, vcc")
        e(f"v_cndmask_b32 v{VS+128+r}, v{VS+128+r}, v{vT2}, vcc")
    e("s_cmp_ge_u32 s29, 8")
    e(f"s_cbranch_scc1 L_{name}_allok")
    for t in range(8):
        e(f"s_cmp_ge_u32 s29, {8 - t}")
        e(f"s_cbranch_scc1 L_{name}_ok{t}")
        for r in range(16):
            e(f"v_mov_b32 v{VS+16*t+r}, v{vT2}")
        e.label(f"L_{name}_ok{t}")
    e.label(f"L_{name}_allok")
    e.stamp()
    e(f"v_max3_f32 v{vMax}, v{VS}, v{VS+1}, v{VS+2}")
    i = 3
    while i + 1 < 144:
        e(f"v_max3_f32 v{vMax}, v{vMax}, v{VS+i}, v{VS+i+1}")
        i += 2
    e(f"v_max_f32 v{vMax}, v{vMax}, v{VS+143}")
    e(f"v_mov_b32 v{vT0}, v{vMax}")
    e("s_nop 1")
    e(f"v_permlane32_swap_b32 v{vMax}, v{vT0}")
    e("s_nop 1")
    e(f"v_max_f32 v{vMax}, v{vMax}, v{vT0}")
    c = 0.25 * 1.4426950408889634
    e(f"s_mov_b32 s30, {f2h(c)}")
    e(f"v_mul_f32 v{vMax}, s30, v{vMax}")
    e(f"v_mov_b32 v{vSumv}, 0")
    for i in range(144):
        e(f"v_fma_f32 v{VS+i}, v{VS+i}, s30, -v{vMax}")
        e(f"v_exp_f32 v{VS+i}, v{VS+i}")
    e("s_nop 0")
    for i in range(144):
        e(f"v_add_f32 v{vSumv}, v{vSumv}, v{VS+i}")
    e(f"v_mov_b32 v{vT0}, v{vSumv}")
    e("s_nop 1")
    e(f"v_permlane32_swap_b32 v{vSumv}, v{vT0}")
    e("s_nop 1")
    e(f"v_add_f32 v{vSumv}, v{vSumv}, v{vT0}")
    e(f"v_rcp_f32 v{vSumv}, v{vSumv}")
    e("s_nop 0")
    e.stamp()
    for i in range(18):
        t, a = i // 2, i % 2
        b = VV + (i % 8) * 4
        s0 = VS + 16 * t + 8 * a
        pb = VP + (i % 4) * 4
        for j in range(4):
            e(f"v_mul_f32 v{s0+2*j}, v{vSumv}, v{s0+2*j}")
            e(f"v_mul_f32 v{s0+2*j+1}, v{vSumv}, v{s0+2*j+1}")
            e(f"v_cvt_pk_bf16_f32 v{pb+j}, v{s0+2*j}, v{s0+2*j+1}")
        nout = min(i + 7, 17) - i
        e(f"s_waitcnt lgkmcnt({nout})")
        cc = "0" if i == 0 else f"v[{VO}:{VO+15}]"
        e(f"v_mfma_f32_32x32x16_bf16 v[{VO}:{VO+15}], v[{b}:{b+3}], v[{pb}:{pb+3}], {cc}")
        if i + 8 < 18:
            e(f"ds_read_b128 v[{b}:{b+3}], v{vVa} offset:{(i+8)*512}")
    e.stamp()
    e("s_nop 15")
    e(f"v_cvt_pk_bf16_f32 v{VP}, v{VO}, v{VO+1}")
    e(f"v_cvt_pk_bf16_f32 v{VP+1}, v{VO+2}, v{VO+3}")
    e(f"v_cvt_pk_bf16_f32 v{VP+2}, v{VO+4}, v{VO+5}")
    e(f"v_cvt_pk_bf16_f32 v{VP+3}, v{VO+6}, v{VO+7}")
    e("s_nop 1")
    e(f"v_permlane32_swap_b32 v{VP}, v{VP+2}")
    e(f"v_permlane32_swap_b32 v{VP+1}, v{VP+3}")
    e("s_nop 1")
    e(f"v_lshlrev_b32 v{vT0}, 4, v{vLane}")
    e("s_lshl_b32 s28, s29, 5")
    e("s_add_u32 s28, s28, s24")
    e("s_lshl_b32 s28, s28, 10")
    e(f"buffer_store_dwordx4 v[{VP}:{VP+3}], v{vT0}, s[32:35], s28 offen")
    e.stamp()
    e("s_waitcnt vmcnt(0)")
    e.stamp()
    e.dump_stamps(255, 7)
    e.label(endl)
    e("s_endpgm")
    e.vmq = []


def kd(name, vgpr=256):
    vg = ((vgpr + 7) // 8) * 8
    return f""".p2align 6
.amdhsa_kernel {name}
  .amdhsa_next_free_vgpr {vg}
  .amdhsa_next_free_sgpr 100
  .amdhsa_accum_offset {vg}
  .amdhsa_group_segment_fixed_size 0
  .amdhsa_kernarg_size 72
  .amdhsa_user_sgpr_count 2
  .amdhsa_user_sgpr_kernarg_segment_ptr 1
  .amdhsa_system_sgpr_workgroup_id_x 1
.end_amdhsa_kernel
"""


def main():
    hdr = open(f"cdna_kernels/{NAME}.s.ref").read().split("; Override launch")[0]
    kernels = []
    body = ""
    for kind in ['qkv', 'attn', 'wo', 'w1', 'w2']:
        nm = f"k{kind}_kernel"
        e = Em()
        if kind == 'attn':
            attn_kernel(e, nm)
            lds, grid, blk, vg = 32768, 256, 512, 256
        else:
            lds, vg = gemm_kernel(e, nm, kind)
            grid = {'qkv': 256, 'wo': 256, 'w1': 240, 'w2': 256}[kind]
            blk = 768
        kernels.append((nm, grid, blk, lds, vg))
        body += f".globl {nm}\n.p2align 8\n.type {nm},@function\n" + e.text()
    out = hdr
    for nm, grid, blk, lds, vg in kernels:
        out += f"; @launch kernel={nm} grid=({grid},1,1) block=({blk},1,1) lds={lds}\n"
    out += '.amdgcn_target "amdgcn-amd-amdhsa--gfx950"\n.text\n' + body
    out += '.section .rodata,"a"\n'
    for nm, grid, blk, lds, vg in kernels:
        out += kd(nm, vg)
    open(sys.argv[1] if len(sys.argv) > 1 else f"cdna_kernels/{NAME}.s", "w").write(out)


main()
```

```python
import sys, struct

def f2h(x):
    return "0x%08x" % struct.unpack("<I", struct.pack("<f", x))[0]

import os
STAMP = os.environ.get("STAMP", "0") == "1"
PREF = os.environ.get("PREF", "1") == "1"
NAME = "sequential_preLN__sliding_block__dense_activation_relu__prompt"
S = 2048
D = 512
DFF = 1376
MB = 1 << 20
WS_QK = 0
WS_VT = 4 * MB
WS_O = 8 * MB
WS_H = 12 * MB
WS_H1 = 16 * MB
WS_ST = 24 * MB
WS_SIZE = 32 * MB


class Em:
    def __init__(self):
        self.l = []
        self.vmq = []
        self.nst = 0

    def __call__(self, s):
        self.l.append("    " + s)

    def label(self, s):
        self.l.append(s + ":")

    def vm(self, tag, s):
        self.l.append("    " + s)
        self.vmq.append(tag)

    def vmwait(self, tags):
        idx = -1
        for i, t in enumerate(self.vmq):
            if t in tags:
                idx = i
        if idx < 0:
            return
        n = len(self.vmq) - idx - 1
        assert n <= 63
        self(f"s_waitcnt vmcnt({n})")
        self.vmq = self.vmq[idx + 1:]

    def stamp(self, who='c'):
        if not STAMP:
            return
        if (os.environ.get("LSTAMP") == "1") != (who == 'l') and who != 'b':
            return
        i = self.nst
        self.nst += 1
        assert i < 16
        self(f"s_memtime s[{64+2*i}:{65+2*i}]")
        self("s_waitcnt lgkmcnt(0)")

    def dump_stamps(self, lastwg, lastwave=15, firstwave=0):
        if not STAMP:
            return
        self("s_load_dwordx2 s[56:57], s[0:1], 56")
        self("s_waitcnt lgkmcnt(0)")
        self("s_mov_b32 s60, s56")
        self("s_and_b32 s61, s57, 0xffff")
        self("s_mov_b32 s62, 256")
        self("s_mov_b32 s63, 0x00020000")
        self("s_mov_b32 s58, 4096")
        self("s_cmp_eq_u32 s2, 0")
        self("s_cselect_b32 s59, 0, 4096")
        self(f"s_cmp_eq_u32 s26, {firstwave}")
        self("s_cselect_b32 s59, s59, 4096")
        self(f"s_cmp_eq_u32 s2, 0")
        self("s_cselect_b32 s58, 128, s58")
        self(f"s_cmp_eq_u32 s26, {lastwave}")
        self("s_cselect_b32 s58, s58, 4096")
        self("s_min_u32 s58, s58, s59")
        self("v_mov_b32 v2, s58")
        for i in range(self.nst):
            self(f"v_mov_b32 v0, s{64+2*i}")
            self(f"v_mov_b32 v1, s{65+2*i}")
            self(f"buffer_store_dwordx2 v[0:1], v2, s[60:63], 0 offen offset:{8*i}")
            self("s_waitcnt vmcnt(0)")

    def text(self):
        return "\n".join(self.l) + "\n"


def srd(e, d, lo, hi, size):
    e(f"s_mov_b32 s{d}, s{lo}")
    e(f"s_and_b32 s{d+1}, s{hi}, 0xffff")
    e(f"s_mov_b32 s{d+2}, {size}")
    e(f"s_mov_b32 s{d+3}, 0x00020000")


def srd_off(e, d, lo, hi, off, size):
    e(f"s_add_u32 s{d}, s{lo}, {off}")
    e(f"s_addc_u32 s{d+1}, s{hi}, 0")
    e(f"s_and_b32 s{d+1}, s{d+1}, 0xffff")
    e(f"s_mov_b32 s{d+2}, {size}")
    e(f"s_mov_b32 s{d+3}, 0x00020000")


def rne_bf16(e, v, tmp):
    e(f"v_cvt_pk_bf16_f32 v{tmp}, v{v}, v{v}")
    e(f"v_lshlrev_b32 v{v}, 16, v{tmp}")


def half_combine(e, v, tmp):
    e(f"v_mov_b32 v{tmp}, v{v}")
    e("s_nop 1")
    e(f"v_permlane32_swap_b32 v{v}, v{tmp}")
    e("s_nop 1")
    e(f"v_add_f32 v{v}, v{v}, v{tmp}")


def gemm_kernel(e, name, kind):
    cfg = {
        'qkv': dict(K=512, NT=3, RS=256, KC=64, ln=True, ldw=3072, wslot=8, nwg=256, NB=4),
        'wo': dict(K=512, NT=2, RS=128, KC=64, ln=False, ldw=1024, wslot=16, nwg=128, NB=4),
        'w1': dict(K=512, NT=3, RS=256, KC=64, ln=True, ldw=2752, wslot=32, nwg=240, NB=4),
        'w2': dict(K=1376, NT=2, RS=128, KC=64, ln=False, ldw=1024, wslot=40, nwg=128, NB=4),
    }[kind]
    K, NT, RS, KC, ln, ldw, NB = cfg['K'], cfg['NT'], cfg['RS'], cfg['KC'], cfg['ln'], cfg['ldw'], cfg['NB']
    nks = K // 16
    KS = KC // 16
    nst = (nks + KS - 1) // KS
    NSLOT = int(os.environ.get("NSLOT", "4"))
    A_ST = 16384
    B_ST = KC * RS
    NBI = B_ST // 1024 // 8
    ST = A_ST + B_ST
    LDS_SCR = NSLOT * ST
    lds_total = LDS_SCR + 2048 + 8 * 384
    rows_per_dma = 1024 // RS
    vLane, vAoff, vBoff = 1, 2, 3
    vSum, vSq = 4, 5
    vCs = 6
    vT0, vT1, vT2, vT3 = 9, 10, 11, 12
    vH = 13
    vRow = 14
    vAoff2 = 15
    VB = 16
    VT = 40
    VE = 46
    VA = 52
    VAa = 60
    VACC = 64
    VR = 112
    VRES = 112
    nvgpr = 160
    endl = f"L_{name}_end"

    e.label(name)
    e(f"s_cmp_ge_u32 s2, {cfg['nwg']}")
    e(f"s_cbranch_scc1 {endl}")
    e.stamp('b')
    e("s_load_dwordx2 s[4:5], s[0:1], 0")
    e(f"s_load_dwordx2 s[6:7], s[0:1], {cfg['wslot']}")
    e("s_load_dwordx4 s[8:11], s[0:1], 56")
    e("s_load_dwordx2 s[54:55], s[0:1], 48")
    e("s_and_b32 s24, s2, 7")
    e("s_lshr_b32 s25, s2, 3")
    if NB == 4:
        e("s_and_b32 s26, s25, 1")
        e("s_lshl_b32 s24, s24, 1")
        e("s_add_u32 s24, s24, s26")
        e("s_lshr_b32 s25, s25, 1")
        e("s_lshl_b32 s50, s24, 2")
    else:
        e("s_and_b32 s26, s25, 3")
        e("s_lshl_b32 s24, s24, 2")
        e("s_add_u32 s24, s24, s26")
        e("s_lshr_b32 s25, s25, 2")
        e("s_lshl_b32 s50, s24, 1")
    e(f"v_and_b32 v{vLane}, 63, v0")
    e(f"v_lshrrev_b32 v{vT0}, 6, v0")
    e("s_nop 0")
    e(f"v_readfirstlane_b32 s26, v{vT0}")
    e(f"v_lshrrev_b32 v{vH}, 5, v{vLane}")
    e("s_and_b32 s48, s26, 3")
    e("s_lshr_b32 s57, s26, 2")
    e("s_cmp_ge_u32 s26, 8")
    e(f"s_cbranch_scc1 L_{name}_compute")

    if RS == 256:
        e(f"v_lshrrev_b32 v{vT0}, 4, v{vLane}")
        e(f"v_and_b32 v{vT1}, 15, v{vLane}")
        e(f"v_lshlrev_b32 v{vT2}, 2, v{vT0}")
        e(f"v_xor_b32 v{vT1}, v{vT1}, v{vT2}")
        e(f"s_mov_b32 s36, {ldw}")
        e(f"v_mul_lo_u32 v{vBoff}, v{vT0}, s36")
        if kind == 'qkv':
            e("s_lshl_b32 s36, s25, 7")
            e("s_lshl_b32 s37, s25, 6")
            e("s_add_u32 s37, s37, 2048")
            e(f"v_lshlrev_b32 v{vT2}, 4, v{vT1}")
            e(f"v_add_u32 v{vT2}, s36, v{vT2}")
            e(f"v_and_b32 v{vT3}, 3, v{vT1}")
            e(f"v_lshlrev_b32 v{vT3}, 4, v{vT3}")
            e(f"v_add_u32 v{vT3}, s37, v{vT3}")
            e(f"v_cmp_gt_u32 vcc, 8, v{vT1}")
            e("s_nop 1")
            e(f"v_cndmask_b32 v{vT2}, v{vT3}, v{vT2}, vcc")
            e(f"v_add_u32 v{vBoff}, v{vBoff}, v{vT2}")
        else:
            e("s_mul_i32 s36, s25, 192")
            e(f"v_lshlrev_b32 v{vT2}, 4, v{vT1}")
            e(f"v_add_u32 v{vT2}, s36, v{vT2}")
            e(f"v_add_u32 v{vBoff}, v{vBoff}, v{vT2}")
        e(f"v_cmp_gt_u32 vcc, 12, v{vT1}")
        e("s_mov_b64 s[38:39], vcc")
    else:
        e(f"v_lshrrev_b32 v{vT0}, 3, v{vLane}")
        e(f"v_and_b32 v{vT1}, 7, v{vLane}")
        e(f"v_bfe_u32 v{vT2}, v{vLane}, 4, 1")
        e(f"v_lshlrev_b32 v{vT2}, 2, v{vT2}")
        e(f"v_xor_b32 v{vT1}, v{vT1}, v{vT2}")
        e(f"v_lshlrev_b32 v{vBoff}, 10, v{vT0}")
        e("s_lshl_b32 s36, s25, 7")
        e(f"v_lshlrev_b32 v{vT2}, 4, v{vT1}")
        e(f"v_add_u32 v{vT2}, s36, v{vT2}")
        e(f"v_add_u32 v{vBoff}, v{vBoff}, v{vT2}")
    if kind == 'qkv':
        e(f"v_lshrrev_b32 v{vT0}, 3, v{vLane}")
        e(f"v_lshrrev_b32 v{vT1}, 4, v{vLane}")
        e(f"v_and_b32 v{vT2}, 7, v{vLane}")
        e(f"v_xor_b32 v{vT3}, v{vT2}, v{vT1}")
        e(f"v_lshlrev_b32 v{vT3}, 4, v{vT3}")
        e(f"v_lshlrev_b32 v{vAoff}, 10, v{vT0}")
        e(f"v_add_u32 v{vAoff2}, 4, v{vT1}")
        e(f"v_xor_b32 v{vAoff2}, v{vT2}, v{vAoff2}")
        e(f"v_lshlrev_b32 v{vAoff2}, 4, v{vAoff2}")
        e(f"v_add_u32 v{vAoff2}, v{vAoff2}, v{vAoff}")
        e(f"v_add_u32 v{vAoff}, v{vAoff}, v{vT3}")
        e("s_lshl_b32 s51, s24, 17")
        e("s_lshl_b32 s52, s48, 15")
        e("s_add_u32 s51, s51, s52")
    else:
        e(f"v_lshlrev_b32 v{vAoff}, 4, v{vLane}")
        if NB == 4:
            e("s_add_u32 s51, s50, s48")
            e(f"s_mul_i32 s51, s51, {nks*1024}")
        else:
            e("s_lshr_b32 s52, s48, 1")
            e("s_add_u32 s51, s50, s52")
            e(f"s_mul_i32 s51, s51, {nks*1024}")
            e("s_and_b32 s52, s48, 1")
            e("s_lshl_b32 s52, s52, 12")
            e("s_add_u32 s51, s51, s52")
    e("s_lshl_b32 s53, s48, 12")
    e(f"s_mul_i32 s43, s26, {NBI*rows_per_dma*ldw}")
    e(f"s_mul_i32 s42, s26, {NBI*1024}")
    e("s_waitcnt lgkmcnt(0)")
    srd(e, 16, 6, 7, K * ldw)
    if kind == 'qkv':
        srd(e, 12, 4, 5, S * D * 2)
    elif kind == 'wo':
        srd_off(e, 12, 10, 11, WS_O, S * D * 2)
    elif kind == 'w1':
        srd_off(e, 12, 10, 11, WS_H, S * D * 2)
    else:
        srd_off(e, 12, 10, 11, WS_H1, S * DFF * 2)

    e("s_lshl_b32 s58, s57, 11")
    e("s_add_u32 s53, s53, s58")
    if kind == 'qkv':
        e("s_lshl_b32 s59, s57, 14")
    else:
        e("s_lshl_b32 s59, s57, 11")
    e("s_add_u32 s51, s51, s59")

    def ld_issue(c):
        slot = c % NSLOT
        for i in range(2):
            e(f"s_add_u32 s44, s53, {slot*ST + i*1024}")
            e("s_mov_b32 m0, s44")
            if kind == 'qkv':
                e(f"s_add_u32 s45, s51, {c*KC*2 + i*8*1024}")
                va = vAoff if i % 2 == 0 else vAoff2
            else:
                e(f"s_add_u32 s45, s51, {c*KS*1024 + i*1024}")
                va = vAoff
            e.vm(('L', c), f"buffer_load_dwordx4 v{va}, s[12:15], s45 offen lds")
        if RS == 256:
            e("s_mov_b64 exec, s[38:39]")
        for i in range(NBI):
            e(f"s_add_u32 s44, s42, {slot*ST + A_ST + i*1024}")
            e("s_mov_b32 m0, s44")
            e(f"s_add_u32 s45, s43, {(c*KC + i*rows_per_dma)*ldw}")
            e.vm(('L', c), f"buffer_load_dwordx4 v{vBoff}, s[16:19], s45 offen lds")
        if RS == 256:
            e("s_mov_b64 exec, -1")

    if ln:
        e(f"v_lshrrev_b32 v{vT0}, 2, v{vLane}")
        e(f"v_and_b32 v{vT0}, 3, v{vT0}")
        e(f"v_lshlrev_b32 v{vT1}, 3, v{vH}")
        e(f"v_add_u32 v{vT1}, v{vT1}, v{vT0}")
        e(f"v_lshlrev_b32 v{vT1}, 8, v{vT1}")
        e(f"v_lshrrev_b32 v{vT2}, 4, v{vLane}")
        e(f"v_and_b32 v{vT2}, 1, v{vT2}")
        e(f"v_lshlrev_b32 v{vT2}, 5, v{vT2}")
        e(f"v_and_b32 v{vT3}, 3, v{vLane}")
        e(f"v_lshlrev_b32 v{vT3}, 3, v{vT3}")
        e(f"v_add_u32 v{vT1}, v{vT1}, v{vT2}")
        e(f"v_add_u32 v{vT1}, v{vT1}, v{vT3}")
        e("s_lshl_b32 s36, s48, 12")
        e(f"v_add_u32 v{vT1}, s36, v{vT1}")
        for t in range(NT):
            e(f"v_xor_b32 v{vT2}, {t}, v{vT0}")
            e(f"v_lshlrev_b32 v{vT2}, 6, v{vT2}")
            e(f"v_add_u32 v{VT+t}, v{vT1}, v{vT2}")
            e(f"v_add_u32 v{VT+3+t}, {2*ST}, v{VT+t}")
            e(f"v_mov_b32 v{vCs+t}, 0")
        e("s_mov_b32 s40, 0x3f803f80")
    e.stamp('l')
    for c in range(min(NSLOT - 1, nst)):
        ld_issue(c)
        e.stamp('l')
        if c < NSLOT - 2:
            e("s_barrier")
    for c in range(nst):
        e.vmwait([('L', c)])
        if c < 4:
            e.stamp('l')
        e("s_barrier")
        if c < 4:
            e.stamp('l')
        if c + NSLOT - 1 < nst:
            ld_issue(c + NSLOT - 1)
        if ln:
            slot = c % NSLOT
            e(f"s_cmp_lg_u32 s57, {c & 1}")
            e(f"s_cbranch_scc1 L_{name}_nocs{c}")
            for t in range(NT):
                vt = VT + t + (3 if slot >= 2 else 0)
                off = (slot % 2) * ST + A_ST
                bb = VB + t * 4
                e(f"ds_read_b64_tr_b16 v[{bb}:{bb+1}], v{vt} offset:{off}")
                e(f"ds_read_b64_tr_b16 v[{bb+2}:{bb+3}], v{vt} offset:{off + 4*RS}")
            e("s_waitcnt lgkmcnt(0)")
            for t in range(NT):
                bb = VB + t * 4
                for j in range(4):
                    e(f"v_dot2_f32_bf16 v{vCs+t}, v{bb+j}, s40, v{vCs+t}")
            e.label(f"L_{name}_nocs{c}")
    if ln:
        e("s_nop 2")
        for t in range(NT):
            half_combine(e, vCs + t, vT0)
        e(f"v_and_b32 v{vT0}, 31, v{vLane}")
        e(f"v_lshlrev_b32 v{vT0}, 2, v{vT0}")
        e(f"s_mul_i32 s36, s26, 384")
        e(f"s_add_u32 s36, s36, {LDS_SCR + 2048}")
        e(f"v_add_u32 v{vT1}, s36, v{vT0}")
        for t in range(NT):
            e(f"ds_write_b32 v{vT1}, v{vCs+t} offset:{t*128}")
        e("s_waitcnt lgkmcnt(0)")
        e("s_barrier")
    if os.environ.get("LSTAMP") == "1":
        e.dump_stamps(cfg['nwg'] - 1, 7, 0)
    e(f"s_branch {endl}")
    e.vmq = []

    e.label(f"L_{name}_compute")
    if NB == 4:
        e("s_add_u32 s50, s50, s48")
        e("s_mov_b32 s49, 0")
        e("s_mov_b32 s42, s48")
    else:
        e("s_and_b32 s42, s48, 1")
        e("s_add_u32 s50, s50, s42")
        e("s_lshr_b32 s49, s48, 1")
    e("s_lshl_b32 s27, s50, 5")
    e(f"v_and_b32 v{vT0}, 31, v{vLane}")
    e(f"v_add_u32 v{vRow}, s27, v{vT0}")
    if kind == 'qkv':
        e(f"v_lshrrev_b32 v{vT1}, 1, v{vT0}")
        e(f"v_and_b32 v{vT1}, 7, v{vT1}")
        e(f"v_lshlrev_b32 v{vT2}, 7, v{vT0}")
        e("s_lshl_b32 s36, s42, 12")
        e(f"v_add_u32 v{vT2}, s36, v{vT2}")
        for s_ in range(4):
            e(f"v_xor_b32 v{vT3}, {2*s_}, v{vT1}")
            e(f"v_xor_b32 v{vT3}, v{vT3}, v{vH}")
            e(f"v_lshlrev_b32 v{vT3}, 4, v{vT3}")
            e(f"v_add_u32 v{VR+s_}, v{vT2}, v{vT3}")
        VAq = VR + 36
        for s_ in range(4):
            e(f"v_mov_b32 v{VAq+s_}, v{VR+s_}")
            e(f"v_add_u32 v{VAq-4+s_}, {2*ST}, v{VR+s_}")
    else:
        e(f"v_lshlrev_b32 v{VAa}, 4, v{vLane}")
        e(f"s_mul_i32 s36, s42, {KS*1024}")
        e(f"v_add_u32 v{VAa}, s36, v{VAa}")
    e(f"v_lshrrev_b32 v{vT0}, 2, v{vLane}")
    e(f"v_and_b32 v{vT0}, 3, v{vT0}")
    e(f"v_lshlrev_b32 v{vT1}, 3, v{vH}")
    e(f"v_add_u32 v{vT1}, v{vT1}, v{vT0}")
    e(f"v_lshlrev_b32 v{vT1}, {RS.bit_length()-1}, v{vT1}")
    e(f"v_lshrrev_b32 v{vT2}, 4, v{vLane}")
    e(f"v_and_b32 v{vT2}, 1, v{vT2}")
    e(f"v_lshlrev_b32 v{vT2}, 5, v{vT2}")
    e(f"v_and_b32 v{vT3}, 3, v{vLane}")
    e(f"v_lshlrev_b32 v{vT3}, 3, v{vT3}")
    e(f"v_add_u32 v{vT1}, v{vT1}, v{vT2}")
    e(f"v_add_u32 v{vT1}, v{vT1}, v{vT3}")
    if RS == 256:
        for t in range(NT):
            e(f"v_xor_b32 v{vT2}, {t}, v{vT0}")
            e(f"v_lshlrev_b32 v{vT2}, 6, v{vT2}")
            e(f"v_add_u32 v{VT+t}, v{vT1}, v{vT2}")
            e(f"v_add_u32 v{VT+3+t}, {2*ST}, v{VT+t}")
    else:
        for t in range(NT):
            e(f"v_lshrrev_b32 v{vT2}, 1, v{vT0}")
            e(f"v_xor_b32 v{vT2}, {t}, v{vT2}")
            e(f"v_lshlrev_b32 v{vT2}, 6, v{vT2}")
            e(f"v_add_u32 v{VT+t}, v{vT1}, v{vT2}")
            e(f"v_add_u32 v{VT+3+t}, {2*ST}, v{VT+t}")
    e(f"v_add_u32 v{VAa+1}, {2*ST}, v{VAa}")
    e("s_mov_b32 s40, 0x3f803f80")
    if ln:
        e(f"v_mov_b32 v{vSum}, 0")
        e(f"v_mov_b32 v{vSq}, 0")
    e("s_waitcnt lgkmcnt(0)")
    srd(e, 20, 10, 11, WS_SIZE)
    if kind == 'wo':
        srd(e, 28, 4, 5, S * D * 2)
        srd_off(e, 32, 10, 11, WS_H, S * D * 2)
    elif kind == 'w2':
        srd_off(e, 28, 10, 11, WS_H, S * D * 2)
        srd(e, 32, 54, 55, S * D * 2)
    elif kind == 'w1':
        srd_off(e, 32, 10, 11, WS_H1, S * DFF * 2)
    if kind in ('wo', 'w2'):
        e("s_lshl_b32 s37, s25, 1")
        e("s_lshl_b32 s36, s50, 15")
        e("s_lshl_b32 s41, s37, 11")
        e("s_add_u32 s36, s36, s41")
        fm, rm = (VE + 1, VE) if kind == 'wo' else (VE, VE + 1)
        e(f"v_lshlrev_b32 v{fm}, 4, v{vLane}")
        e(f"v_add_u32 v{fm}, s36, v{fm}")
        e(f"v_lshlrev_b32 v{vT0}, 10, v{vRow}")
        e(f"v_lshlrev_b32 v{vT1}, 4, v{vH}")
        e(f"v_add_u32 v{vT0}, v{vT0}, v{vT1}")
        e("s_lshl_b32 s36, s37, 6")
        e(f"v_add_u32 v{rm}, s36, v{vT0}")
        for t in range(NT):
            to = t * (64 if kind == 'wo' else 2048)
            e.vm('R', f"buffer_load_dwordx4 v[{VRES+8*t}:{VRES+8*t+3}], v{VE}, s[28:31], 0 offen offset:{to}")
            e.vm('R', f"buffer_load_dwordx4 v[{VRES+8*t+4}:{VRES+8*t+7}], v{VE}, s[28:31], 0 offen offset:{to + (32 if kind=='wo' else 1024)}")
    e.stamp()

    def forms(t):
        return 'N' if (kind == 'qkv' and t == 2) else 'T'

    def frag_reads(c, s_, buf):
        slot = c % NSLOT
        hi = 3 if slot >= 2 else 0
        lo = (slot % 2) * ST
        if kind == 'qkv':
            va = VR + 36 + s_ - (4 if slot >= 2 else 0)
            e(f"ds_read_b128 v[{VA+buf*4}:{VA+buf*4+3}], v{va} offset:{lo}")
        else:
            va = VAa + (1 if slot >= 2 else 0)
            e(f"ds_read_b128 v[{VA+buf*4}:{VA+buf*4+3}], v{va} offset:{lo + s_*1024}")
        for t in range(NT):
            bb = VB + buf * NT * 4 + t * 4
            off = lo + A_ST + s_ * 16 * RS
            e(f"ds_read_b64_tr_b16 v[{bb}:{bb+1}], v{VT+hi+t} offset:{off}")
            e(f"ds_read_b64_tr_b16 v[{bb+2}:{bb+3}], v{VT+hi+t} offset:{off + 4*RS}")

    first = True
    nrd = 2 * NT + 1
    for _ in range(NSLOT - 2):
        e("s_barrier")
    for c in range(nst):
        ns = min(KS, nks - c * KS)
        e("s_barrier")
        if c < 3:
            e.stamp()
        if os.environ.get("NOCOMP") == "1" and c > 0:
            continue
        frag_reads(c, 0, 0)
        for s_ in range(ns):
            buf = s_ & 1
            if s_ + 1 < ns:
                frag_reads(c, s_ + 1, buf ^ 1)
                e(f"s_waitcnt lgkmcnt({nrd})")
            else:
                e("s_waitcnt lgkmcnt(0)")
            a = VA + buf * 4
            for t in range(NT):
                bb = VB + buf * NT * 4 + t * 4
                acc = VACC + t * 16
                cc = "0" if first else f"v[{acc}:{acc+15}]"
                if forms(t) == 'T':
                    e(f"v_mfma_f32_32x32x16_bf16 v[{acc}:{acc+15}], v[{bb}:{bb+3}], v[{a}:{a+3}], {cc}")
                else:
                    e(f"v_mfma_f32_32x32x16_bf16 v[{acc}:{acc+15}], v[{a}:{a+3}], v[{bb}:{bb+3}], {cc}")
                if ln:
                    if t == 0:
                        for j in range(4):
                            e(f"v_dot2_f32_bf16 v{vSum}, v{a+j}, s40, v{vSum}")
                    if t == 1:
                        for j in range(4):
                            e(f"v_dot2_f32_bf16 v{vSq}, v{a+j}, v{a+j}, v{vSq}")
            first = False
    e.stamp()
    e("s_nop 15")
    if ln:
        e("s_barrier")
        half_combine(e, vSum, vT0)
        half_combine(e, vSq, vT0)
        e(f"v_mul_f32 v{vSum}, {f2h(1.0/512)}, v{vSum}")
        e(f"v_mul_f32 v{vSq}, {f2h(1.0/512)}, v{vSq}")
        e(f"v_fma_f32 v{vSq}, -v{vSum}, v{vSum}, v{vSq}")
        e(f"v_max_f32 v{vSq}, 0, v{vSq}")
        rne_bf16(e, vSum, vT0)
        rne_bf16(e, vSq, vT0)
        e(f"v_add_f32 v{vSq}, 0x3727c5ac, v{vSq}")
        rne_bf16(e, vSq, vT0)
        e(f"v_sqrt_f32 v{vSq}, v{vSq}")
        e("s_nop 0")
        rne_bf16(e, vSq, vT0)
        e(f"v_rcp_f32 v{vSq}, v{vSq}")
        e("s_nop 0")
        e(f"v_sub_f32 v{VE}, 0, v{vSum}")
        e(f"v_mov_b32 v{VE+1}, v{VE}")
        e(f"v_mov_b32 v{VE+2}, v{vSq}")
        e(f"v_mov_b32 v{VE+3}, v{vSq}")
        e(f"v_and_b32 v{vT0}, 31, v{vLane}")
        e(f"v_lshlrev_b32 v{vT0}, 2, v{vT0}")
        e(f"v_add_u32 v{vT1}, {LDS_SCR + 2048}, v{vT0}")
        for jj in range(8):
            for t in range(NT):
                e(f"ds_read_b32 v{VR+jj*3+t}, v{vT1} offset:{jj*384 + t*128}")
        e("s_waitcnt lgkmcnt(0)")
        for t in range(NT):
            e(f"v_add_f32 v{vCs+t}, v{VR+t}, v{VR+3+t}")
            for jj in range(2, 8):
                e(f"v_add_f32 v{vCs+t}, v{vCs+t}, v{VR+jj*3+t}")
        e(f"s_lshl_b32 s47, s48, 9")
        e(f"s_add_u32 s47, s47, {LDS_SCR}")
        e(f"v_add_u32 v{vT1}, s47, v{vT0}")
        nT = 2 if kind == 'qkv' else 3
        for t in range(nT):
            e(f"ds_write_b32 v{vT1}, v{vCs+t} offset:{t*128}")
        if kind == 'qkv':
            e(f"ds_write_b32 v{vT1}, v{vSum} offset:256")
            e(f"ds_write_b32 v{vT1}, v{vSq} offset:384")
        e(f"v_lshlrev_b32 v{vT1}, 4, v{vH}")
        e(f"v_add_u32 v{vT1}, s47, v{vT1}")
        e("s_waitcnt lgkmcnt(0)")
        for t in range(nT):
            for q in range(4):
                e(f"ds_read_b128 v[{VR+t*16+q*4}:{VR+t*16+q*4+3}], v{vT1} offset:{t*128 + q*32}")
        e("s_waitcnt lgkmcnt(0)")
    e.stamp()
    for t in range(NT):
        acc = VACC + t * 16
        if forms(t) == 'T':
            if ln:
                for j in range(0, 16, 2):
                    e(f"v_pk_fma_f32 v[{acc+j}:{acc+j+1}], v[{VR+t*16+j}:{VR+t*16+j+1}], v[{VE}:{VE+1}], v[{acc+j}:{acc+j+1}]")
                    e(f"v_pk_mul_f32 v[{acc+j}:{acc+j+1}], v[{acc+j}:{acc+j+1}], v[{VE+2}:{VE+3}]")
            for q in range(4):
                e(f"v_cvt_pk_bf16_f32 v{acc+2*q}, v{acc+4*q}, v{acc+4*q+1}")
                e(f"v_cvt_pk_bf16_f32 v{acc+2*q+1}, v{acc+4*q+2}, v{acc+4*q+3}")
            if kind == 'w1':
                for j in range(8):
                    e(f"v_pk_max_i16 v{acc+j}, v{acc+j}, 0")
            e("s_nop 1")
            for pr in range(2):
                e(f"v_permlane32_swap_b32 v{acc+4*pr}, v{acc+4*pr+2}")
                e(f"v_permlane32_swap_b32 v{acc+4*pr+1}, v{acc+4*pr+3}")
            e("s_nop 1")
            if kind == 'qkv':
                if t == 0:
                    e(f"v_lshlrev_b32 v{vT2}, 5, v{vRow}")
                    e(f"v_lshlrev_b32 v{vT3}, 4, v{vH}")
                    e(f"v_add_u32 v{vT2}, v{vT2}, v{vT3}")
                e(f"s_lshl_b32 s36, s25, 2")
                e(f"s_add_u32 s36, s36, {2*t}")
                e(f"s_lshl_b32 s36, s36, 16")
                e(f"s_add_u32 s37, s36, 65536")
                e(f"buffer_store_dwordx4 v[{acc}:{acc+3}], v{vT2}, s[20:23], s36 offen")
                e(f"buffer_store_dwordx4 v[{acc+4}:{acc+7}], v{vT2}, s[20:23], s37 offen")
            elif kind == 'w1':
                e(f"s_mul_i32 s36, s25, 3")
                e(f"s_add_u32 s36, s36, {t}")
                e(f"s_cmp_ge_u32 s36, 43")
                e(f"s_cbranch_scc1 L_{name}_skip{t}")
                e(f"s_lshl_b32 s36, s36, 11")
                e(f"s_mul_i32 s37, s50, {86*1024}")
                e(f"s_add_u32 s36, s36, s37")
                e(f"v_lshlrev_b32 v{vT2}, 4, v{vLane}")
                e(f"buffer_store_dwordx4 v[{acc}:{acc+3}], v{vT2}, s[32:35], s36 offen")
                e(f"buffer_store_dwordx4 v[{acc+4}:{acc+7}], v{vT2}, s[32:35], s36 offen offset:1024")
                e.label(f"L_{name}_skip{t}")
            else:
                e.vmwait(['R'])
                for j in range(8):
                    a_ = acc + j
                    r_ = VRES + 8 * t + j
                    e(f"v_lshlrev_b32 v{vT0}, 16, v{a_}")
                    e(f"v_and_b32 v{vT1}, 0xffff0000, v{a_}")
                    e(f"v_lshlrev_b32 v{vT2}, 16, v{r_}")
                    e(f"v_and_b32 v{vT3}, 0xffff0000, v{r_}")
                    e(f"v_add_f32 v{vT0}, v{vT0}, v{vT2}")
                    e(f"v_add_f32 v{vT1}, v{vT1}, v{vT3}")
                    e(f"v_cvt_pk_bf16_f32 v{a_}, v{vT0}, v{vT1}")
                o2 = 1024 if kind == 'wo' else 32
                to = t * (2048 if kind == 'wo' else 64)
                e(f"buffer_store_dwordx4 v[{acc}:{acc+3}], v{VE+1}, s[32:35], 0 offen offset:{to}")
                e(f"buffer_store_dwordx4 v[{acc+4}:{acc+7}], v{VE+1}, s[32:35], 0 offen offset:{to + o2}")
        else:
            for q in range(4):
                e(f"ds_read_b128 v[{VR+q*4}:{VR+q*4+3}], v{vT1} offset:{256 + q*32}")
                e(f"ds_read_b128 v[{VR+16+q*4}:{VR+16+q*4+3}], v{vT1} offset:{384 + q*32}")
            e("s_waitcnt lgkmcnt(0)")
            for j in range(16):
                e(f"v_fma_f32 v{acc+j}, -v{VR+j}, v{vCs+t}, v{acc+j}")
                e(f"v_mul_f32 v{acc+j}, v{VR+16+j}, v{acc+j}")
            for q in range(4):
                e(f"v_cvt_pk_bf16_f32 v{acc+2*q}, v{acc+4*q}, v{acc+4*q+1}")
                e(f"v_cvt_pk_bf16_f32 v{acc+2*q+1}, v{acc+4*q+2}, v{acc+4*q+3}")
            e(f"v_and_b32 v{vT2}, 15, v{vLane}")
            e(f"v_lshlrev_b32 v{vT2}, 5, v{vT2}")
            e(f"v_lshlrev_b32 v{vT3}, 4, v{vH}")
            e(f"v_add_u32 v{vT2}, v{vT2}, v{vT3}")
            e(f"v_bfe_u32 v{vT3}, v{vLane}, 4, 1")
            e(f"v_lshlrev_b32 v{vT3}, 16, v{vT3}")
            e(f"v_add_u32 v{vT2}, v{vT2}, v{vT3}")
            e(f"s_lshl_b32 s36, s25, 17")
            e(f"s_lshl_b32 s37, s27, 5")
            e(f"s_add_u32 s36, s36, s37")
            e(f"s_add_u32 s36, s36, {WS_VT}")
            e(f"buffer_store_dwordx4 v[{acc}:{acc+3}], v{vT2}, s[20:23], s36 offen")
            e(f"buffer_store_dwordx4 v[{acc+4}:{acc+7}], v{vT2}, s[20:23], s36 offen offset:512")
    e.stamp()
    e("s_waitcnt vmcnt(0)")
    e.stamp()
    if os.environ.get("LSTAMP") != "1":
        e.dump_stamps(cfg['nwg'] - 1, 11, 8)
    e.label(endl)
    e("s_endpgm")
    e.vmq = []
    return lds_total, nvgpr


def attn_kernel(e, name):
    endl = f"L_{name}_end"
    vLane, vH, vT0, vT1, vT2, vT3 = 1, 2, 3, 4, 5, 6
    vQoff, vKa, vVa = 7, 8, 9
    vMax, vSumv = 10, 11
    vQi = 12
    VQ = 16
    VK = 20
    VS = 56
    VV = 200
    VO = 20
    VP = 36
    LK = 0
    LV = 16384
    e.label(name)
    e("s_cmp_ge_u32 s2, 256")
    e(f"s_cbranch_scc1 {endl}")
    e.stamp()
    e("s_load_dwordx2 s[8:9], s[0:1], 64")
    e("s_and_b32 s24, s2, 7")
    e("s_lshl_b32 s24, s24, 2")
    e("s_lshr_b32 s25, s2, 3")
    e("s_and_b32 s26, s25, 3")
    e("s_add_u32 s24, s24, s26")
    e("s_lshr_b32 s25, s2, 5")
    e(f"v_and_b32 v{vLane}, 63, v0")
    e(f"v_lshrrev_b32 v{vT0}, 6, v0")
    e("s_nop 0")
    e(f"v_readfirstlane_b32 s26, v{vT0}")
    e(f"v_lshrrev_b32 v{vH}, 5, v{vLane}")
    e("s_lshl_b32 s27, s25, 3")
    e("s_add_u32 s27, s27, s26")
    e("s_mov_b32 s29, s27")
    e("s_lshl_b32 s27, s27, 5")
    e("s_waitcnt lgkmcnt(0)")
    e("s_lshl_b32 s28, s24, 16")
    e("s_add_u32 s12, s8, s28")
    e("s_addc_u32 s13, s9, 0")
    e("s_and_b32 s13, s13, 0xffff")
    e("s_mov_b32 s14, 65536")
    e("s_mov_b32 s15, 0x00020000")
    e(f"s_add_u32 s16, s12, {32*65536}")
    e("s_addc_u32 s17, s13, 0")
    e("s_and_b32 s17, s17, 0xffff")
    e("s_mov_b32 s18, 65536")
    e("s_mov_b32 s19, 0x00020000")
    e(f"s_add_u32 s20, s12, {WS_VT}")
    e("s_addc_u32 s21, s13, 0")
    e("s_and_b32 s21, s21, 0xffff")
    e("s_mov_b32 s22, 65536")
    e("s_mov_b32 s23, 0x00020000")
    srd_off(e, 32, 8, 9, WS_O, S * D * 2)
    e(f"v_lshlrev_b32 v{vT0}, 4, v{vLane}")
    e("s_lshl_b32 s30, s25, 13")
    e("s_sub_u32 s30, s30, 8192")
    e("s_lshl_b32 s31, s26, 11")
    e("s_add_u32 s30, s30, s31")
    e(f"v_add_u32 v{vT1}, s30, v{vT0}")
    e(f"v_add_u32 v{vT2}, 1024, v{vT1}")
    e("s_mov_b32 m0, s31")
    e("s_nop 0")
    e.vm('L', f"buffer_load_dwordx4 v{vT1}, s[16:19], 0 offen lds")
    e("s_add_u32 s36, s31, 1024")
    e("s_mov_b32 m0, s36")
    e("s_nop 0")
    e.vm('L', f"buffer_load_dwordx4 v{vT2}, s[16:19], 0 offen lds")
    e(f"s_add_u32 s36, s31, {LV}")
    e("s_mov_b32 m0, s36")
    e("s_nop 0")
    e.vm('L', f"buffer_load_dwordx4 v{vT1}, s[20:23], 0 offen lds")
    e(f"s_add_u32 s36, s31, {LV+1024}")
    e("s_mov_b32 m0, s36")
    e("s_nop 0")
    e.vm('L', f"buffer_load_dwordx4 v{vT2}, s[20:23], 0 offen lds")
    e(f"v_and_b32 v{vT0}, 31, v{vLane}")
    e(f"v_add_u32 v{vQi}, s27, v{vT0}")
    e(f"v_lshlrev_b32 v{vQoff}, 5, v{vQi}")
    e(f"v_lshlrev_b32 v{vT1}, 4, v{vH}")
    e(f"v_add_u32 v{vQoff}, v{vQoff}, v{vT1}")
    e.vm('L', f"buffer_load_dwordx4 v[{VQ}:{VQ+3}], v{vQoff}, s[12:15], 0 offen")
    if PREF:
        e("s_load_dwordx2 s[40:41], s[0:1], 16")
        e("s_load_dwordx4 s[44:47], s[0:1], 32")
        e("s_lshl_b32 s38, s2, 3")
        e("s_add_u32 s38, s38, s26")
        e("s_lshl_b32 s38, s38, 10")
        e(f"v_lshlrev_b32 v{vT3}, 4, v{vLane}")
        e("s_waitcnt lgkmcnt(0)")
        for (lo, hi, sz) in ((40, 41, 512*1024), (44, 45, 1376*1024), (46, 47, 1376*1024)):
            e(f"s_mov_b32 s48, s{lo}")
            e(f"s_and_b32 s49, s{hi}, 0xffff")
            e(f"s_mov_b32 s50, {sz}")
            e("s_mov_b32 s51, 0x00020000")
            e.vm('P', f"buffer_load_dwordx4 v[240:243], v{vT3}, s[48:51], s38 offen")
    e(f"v_lshlrev_b32 v{vKa}, 5, v{vT0}")
    e(f"v_add_u32 v{vKa}, v{vKa}, v{vT1}")
    e("s_lshl_b32 s36, s26, 10")
    e(f"v_add_u32 v{vKa}, s36, v{vKa}")
    e(f"v_and_b32 v{vT0}, 15, v{vLane}")
    e(f"v_lshlrev_b32 v{vVa}, 5, v{vT0}")
    e(f"v_add_u32 v{vVa}, v{vVa}, v{vT1}")
    e(f"s_add_u32 s36, s36, {LV}")
    e(f"v_add_u32 v{vVa}, s36, v{vVa}")
    e(f"v_and_b32 v{vT0}, 16, v{vLane}")
    e(f"v_cmp_ne_u32 vcc, 0, v{vT0}")
    e(f"v_mov_b32 v{vT0}, 32768")
    e("s_nop 1")
    e(f"v_cndmask_b32 v{vVa}, v{vVa}, v{vT0}, vcc")
    e(f"v_mov_b32 v{VS}, 0x3f803f80")
    e(f"v_mov_b32 v{VS+1}, 0x3f803f80")
    e(f"v_mov_b32 v{VS+2}, 0x3f803f80")
    e(f"v_mov_b32 v{VS+3}, 0x3f803f80")
    e(f"v_lshlrev_b32 v{vT0}, 4, v0")
    e(f"ds_write_b128 v{vT0}, v[{VS}:{VS+3}] offset:32768")
    e(f"v_cmp_gt_u32 vcc, 128, v0")
    e("s_and_saveexec_b64 s[52:53], vcc")
    e(f"ds_write_b128 v{vT0}, v[{VS}:{VS+3}] offset:{32768+8192}")
    e("s_mov_b64 exec, s[52:53]")
    e("s_waitcnt lgkmcnt(0)")
    e.stamp()
    e.vmwait(['L'])
    e("s_barrier")
    e.stamp()
    for t in range(9):
        e(f"ds_read_b128 v[{VK+4*t}:{VK+4*t+3}], v{vKa} offset:{t*1024}")
    for t in range(9):
        e(f"s_waitcnt lgkmcnt({8-t})")
        e(f"v_mfma_f32_32x32x16_bf16 v[{VS+16*t}:{VS+16*t+15}], v[{VK+4*t}:{VK+4*t+3}], v[{VQ}:{VQ+3}], 0")
    for i in range(8):
        e(f"ds_read_b128 v[{VV+4*i}:{VV+4*i+3}], v{vVa} offset:{i*512}")
    e("s_nop 15")
    e.stamp()
    e(f"v_and_b32 v{vT0}, 31, v{vLane}")
    e(f"v_lshlrev_b32 v{vT1}, 2, v{vH}")
    e(f"v_sub_u32 v{vT0}, v{vT0}, v{vT1}")
    e(f"v_mov_b32 v{vT2}, 0xff800000")
    for r in range(16):
        c = (r & 3) + 8 * (r >> 2)
        e(f"v_cmp_gt_i32 vcc, {c}, v{vT0}")
        e("s_nop 1")
        e(f"v_cndmask_b32 v{VS+r}, v{vT2}, v{VS+r}, vcc")
        e(f"v_cndmask_b32 v{VS+128+r}, v{VS+128+r}, v{vT2}, vcc")
    e("s_cmp_ge_u32 s29, 8")
    e(f"s_cbranch_scc1 L_{name}_allok")
    for t in range(8):
        e(f"s_cmp_ge_u32 s29, {8 - t}")
        e(f"s_cbranch_scc1 L_{name}_ok{t}")
        for r in range(16):
            e(f"v_mov_b32 v{VS+16*t+r}, v{vT2}")
        e.label(f"L_{name}_ok{t}")
    e.label(f"L_{name}_allok")
    e.stamp()
    e(f"v_max3_f32 v{vMax}, v{VS}, v{VS+1}, v{VS+2}")
    i = 3
    while i + 1 < 144:
        e(f"v_max3_f32 v{vMax}, v{vMax}, v{VS+i}, v{VS+i+1}")
        i += 2
    e(f"v_max_f32 v{vMax}, v{vMax}, v{VS+143}")
    e(f"v_mov_b32 v{vT0}, v{vMax}")
    e("s_nop 1")
    e(f"v_permlane32_swap_b32 v{vMax}, v{vT0}")
    e("s_nop 1")
    e(f"v_max_f32 v{vMax}, v{vMax}, v{vT0}")
    c = 0.25 * 1.4426950408889634
    e(f"s_mov_b32 s30, {f2h(c)}")
    e(f"v_mul_f32 v{vMax}, s30, v{vMax}")
    e(f"v_mov_b32 v{vSumv}, 0")
    for i in range(144):
        e(f"v_fma_f32 v{VS+i}, v{VS+i}, s30, -v{vMax}")
        e(f"v_exp_f32 v{VS+i}, v{VS+i}")
    e.stamp()
    for i in range(18):
        t, a = i // 2, i % 2
        b = VV + (i % 8) * 4
        s0 = VS + 16 * t + 8 * a
        pb = VP + (i % 4) * 4
        for j in range(4):
            e(f"v_cvt_pk_bf16_f32 v{pb+j}, v{s0+2*j}, v{s0+2*j+1}")
        nout = min(i + 7, 17) - i
        e(f"s_waitcnt lgkmcnt({nout})")
        e("s_nop 0")
        cc = "0" if i == 0 else f"v[{VO}:{VO+15}]"
        e(f"v_mfma_f32_32x32x16_bf16 v[{VO}:{VO+15}], v[{b}:{b+3}], v[{pb}:{pb+3}], {cc}")
        if i + 8 < 18:
            e(f"ds_read_b128 v[{b}:{b+3}], v{vVa} offset:{(i+8)*512}")
    e.stamp()
    e("s_nop 15")
    e(f"v_rcp_f32 v{vSumv}, v{VO+8}")
    e("s_nop 0")
    for j in range(8):
        e(f"v_mul_f32 v{VO+j}, v{vSumv}, v{VO+j}")
    e(f"v_cvt_pk_bf16_f32 v{VP}, v{VO}, v{VO+1}")
    e(f"v_cvt_pk_bf16_f32 v{VP+1}, v{VO+2}, v{VO+3}")
    e(f"v_cvt_pk_bf16_f32 v{VP+2}, v{VO+4}, v{VO+5}")
    e(f"v_cvt_pk_bf16_f32 v{VP+3}, v{VO+6}, v{VO+7}")
    e("s_nop 1")
    e(f"v_permlane32_swap_b32 v{VP}, v{VP+2}")
    e(f"v_permlane32_swap_b32 v{VP+1}, v{VP+3}")
    e("s_nop 1")
    e(f"v_lshlrev_b32 v{vT0}, 4, v{vLane}")
    e("s_lshl_b32 s28, s29, 5")
    e("s_add_u32 s28, s28, s24")
    e("s_lshl_b32 s28, s28, 10")
    e(f"buffer_store_dwordx4 v[{VP}:{VP+3}], v{vT0}, s[32:35], s28 offen")
    e.stamp()
    e("s_waitcnt vmcnt(0)")
    e.stamp()
    e.dump_stamps(255, 7)
    e.label(endl)
    e("s_endpgm")
    e.vmq = []


def kd(name, vgpr=256):
    vg = ((vgpr + 7) // 8) * 8
    return f""".p2align 6
.amdhsa_kernel {name}
  .amdhsa_next_free_vgpr {vg}
  .amdhsa_next_free_sgpr 100
  .amdhsa_accum_offset {vg}
  .amdhsa_group_segment_fixed_size 0
  .amdhsa_kernarg_size 72
  .amdhsa_user_sgpr_count 2
  .amdhsa_user_sgpr_kernarg_segment_ptr 1
  .amdhsa_system_sgpr_workgroup_id_x 1
.end_amdhsa_kernel
"""


def main():
    hdr = open(f"cdna_kernels/{NAME}.s.ref").read().split("; Override launch")[0]
    kernels = []
    body = ""
    for kind in ['qkv', 'attn', 'wo', 'w1', 'w2']:
        nm = f"k{kind}_kernel"
        e = Em()
        if kind == 'attn':
            attn_kernel(e, nm)
            lds, grid, blk, vg = 32768 + 10240, 256, 512, 256
        else:
            lds, vg = gemm_kernel(e, nm, kind)
            grid = {'qkv': 256, 'wo': 128, 'w1': 240, 'w2': 128}[kind]
            blk = 768
        kernels.append((nm, grid, blk, lds, vg))
        body += f".globl {nm}\n.p2align 8\n.type {nm},@function\n" + e.text()
    out = hdr
    for nm, grid, blk, lds, vg in kernels:
        out += f"; @launch kernel={nm} grid=({grid},1,1) block=({blk},1,1) lds={lds}\n"
    out += '.amdgcn_target "amdgcn-amd-amdhsa--gfx950"\n.text\n' + body
    out += '.section .rodata,"a"\n'
    for nm, grid, blk, lds, vg in kernels:
        out += kd(nm, vg)
    open(sys.argv[1] if len(sys.argv) > 1 else f"cdna_kernels/{NAME}.s", "w").write(out)


main()
```

```python
import sys, struct

def f2h(x):
    return "0x%08x" % struct.unpack("<I", struct.pack("<f", x))[0]

import os
STAMP = os.environ.get("STAMP", "0") == "1"
PREF = os.environ.get("PREF", "1") == "1"
NAME = "sequential_preLN__sliding_block__dense_activation_relu__prompt"
S = 2048
D = 512
DFF = 1376
MB = 1 << 20
WS_QK = 0
WS_VT = 4 * MB
WS_O = 8 * MB
WS_H = 12 * MB
WS_H1 = 16 * MB
WS_ST = 24 * MB
WS_SIZE = 32 * MB


class Em:
    def __init__(self):
        self.l = []
        self.vmq = []
        self.nst = 0

    def __call__(self, s):
        self.l.append("    " + s)

    def label(self, s):
        self.l.append(s + ":")

    def vm(self, tag, s):
        self.l.append("    " + s)
        self.vmq.append(tag)

    def vmwait(self, tags):
        idx = -1
        for i, t in enumerate(self.vmq):
            if t in tags:
                idx = i
        if idx < 0:
            return
        n = len(self.vmq) - idx - 1
        assert n <= 63
        self(f"s_waitcnt vmcnt({n})")
        self.vmq = self.vmq[idx + 1:]

    def stamp(self, who='c'):
        if not STAMP:
            return
        if (os.environ.get("LSTAMP") == "1") != (who == 'l') and who != 'b':
            return
        i = self.nst
        self.nst += 1
        assert i < 16
        self(f"s_memtime s[{64+2*i}:{65+2*i}]")
        self("s_waitcnt lgkmcnt(0)")

    def dump_stamps(self, lastwg, lastwave=15, firstwave=0):
        if not STAMP:
            return
        self("s_load_dwordx2 s[56:57], s[0:1], 56")
        self("s_waitcnt lgkmcnt(0)")
        self("s_mov_b32 s60, s56")
        self("s_and_b32 s61, s57, 0xffff")
        self("s_mov_b32 s62, 256")
        self("s_mov_b32 s63, 0x00020000")
        self("s_mov_b32 s58, 4096")
        self("s_cmp_eq_u32 s2, 0")
        self("s_cselect_b32 s59, 0, 4096")
        self(f"s_cmp_eq_u32 s26, {firstwave}")
        self("s_cselect_b32 s59, s59, 4096")
        self(f"s_cmp_eq_u32 s2, 0")
        self("s_cselect_b32 s58, 128, s58")
        self(f"s_cmp_eq_u32 s26, {lastwave}")
        self("s_cselect_b32 s58, s58, 4096")
        self("s_min_u32 s58, s58, s59")
        self("v_mov_b32 v2, s58")
        for i in range(self.nst):
            self(f"v_mov_b32 v0, s{64+2*i}")
            self(f"v_mov_b32 v1, s{65+2*i}")
            self(f"buffer_store_dwordx2 v[0:1], v2, s[60:63], 0 offen offset:{8*i}")
            self("s_waitcnt vmcnt(0)")

    def text(self):
        return "\n".join(self.l) + "\n"


def srd(e, d, lo, hi, size):
    e(f"s_mov_b32 s{d}, s{lo}")
    e(f"s_and_b32 s{d+1}, s{hi}, 0xffff")
    e(f"s_mov_b32 s{d+2}, {size}")
    e(f"s_mov_b32 s{d+3}, 0x00020000")


def srd_off(e, d, lo, hi, off, size):
    e(f"s_add_u32 s{d}, s{lo}, {off}")
    e(f"s_addc_u32 s{d+1}, s{hi}, 0")
    e(f"s_and_b32 s{d+1}, s{d+1}, 0xffff")
    e(f"s_mov_b32 s{d+2}, {size}")
    e(f"s_mov_b32 s{d+3}, 0x00020000")


def rne_bf16(e, v, tmp):
    e(f"v_cvt_pk_bf16_f32 v{tmp}, v{v}, v{v}")
    e(f"v_lshlrev_b32 v{v}, 16, v{tmp}")


def half_combine(e, v, tmp):
    e(f"v_mov_b32 v{tmp}, v{v}")
    e("s_nop 1")
    e(f"v_permlane32_swap_b32 v{v}, v{tmp}")
    e("s_nop 1")
    e(f"v_add_f32 v{v}, v{v}, v{tmp}")


def gemm_kernel(e, name, kind):
    cfg = {
        'qkv': dict(K=512, NT=3, RS=256, KC=64, ln=True, ldw=3072, wslot=8, nwg=256, NB=4),
        'wo': dict(K=512, NT=1, RS=128, KC=128, ln=False, ldw=1024, wslot=16, nwg=256, NB=2),
        'w1': dict(K=512, NT=3, RS=256, KC=64, ln=True, ldw=2752, wslot=32, nwg=240, NB=4),
        'w2': dict(K=1376, NT=1, RS=128, KC=128, ln=False, ldw=1024, wslot=40, nwg=256, NB=2),
    }[kind]
    K, NT, RS, KC, ln, ldw, NB = cfg['K'], cfg['NT'], cfg['RS'], cfg['KC'], cfg['ln'], cfg['ldw'], cfg['NB']
    nks = K // 16
    KS = KC // 16
    nst = (nks + KS - 1) // KS
    NSLOT = int(os.environ.get("NSLOT", "4"))
    A_ST = 16384
    B_ST = 16384
    ST = A_ST + B_ST
    LDS_SCR = NSLOT * ST
    lds_total = LDS_SCR + 2048 + 8 * 384
    rows_per_dma = 1024 // RS
    vLane, vAoff, vBoff = 1, 2, 3
    vSum, vSq = 4, 5
    vCs = 6
    vT0, vT1, vT2, vT3 = 9, 10, 11, 12
    vH = 13
    vRow = 14
    vAoff2 = 15
    VB = 16
    VT = 40
    VE = 46
    VA = 52
    VAa = 60
    VACC = 64
    VR = 112
    VRES = 112
    nvgpr = 160
    endl = f"L_{name}_end"

    e.label(name)
    e(f"s_cmp_ge_u32 s2, {cfg['nwg']}")
    e(f"s_cbranch_scc1 {endl}")
    e.stamp('b')
    e("s_load_dwordx2 s[4:5], s[0:1], 0")
    e(f"s_load_dwordx2 s[6:7], s[0:1], {cfg['wslot']}")
    e("s_load_dwordx4 s[8:11], s[0:1], 56")
    e("s_load_dwordx2 s[54:55], s[0:1], 48")
    e("s_and_b32 s24, s2, 7")
    e("s_lshr_b32 s25, s2, 3")
    if NB == 4:
        e("s_and_b32 s26, s25, 1")
        e("s_lshl_b32 s24, s24, 1")
        e("s_add_u32 s24, s24, s26")
        e("s_lshr_b32 s25, s25, 1")
        e("s_lshl_b32 s50, s24, 2")
    else:
        e("s_and_b32 s26, s25, 3")
        e("s_lshl_b32 s24, s24, 2")
        e("s_add_u32 s24, s24, s26")
        e("s_lshr_b32 s25, s25, 2")
        e("s_lshl_b32 s50, s24, 1")
    e(f"v_and_b32 v{vLane}, 63, v0")
    e(f"v_lshrrev_b32 v{vT0}, 6, v0")
    e("s_nop 0")
    e(f"v_readfirstlane_b32 s26, v{vT0}")
    e(f"v_lshrrev_b32 v{vH}, 5, v{vLane}")
    e("s_and_b32 s48, s26, 3")
    e("s_lshr_b32 s57, s26, 2")
    e("s_cmp_ge_u32 s26, 8")
    e(f"s_cbranch_scc1 L_{name}_compute")

    if RS == 256:
        e(f"v_lshrrev_b32 v{vT0}, 4, v{vLane}")
        e(f"v_and_b32 v{vT1}, 15, v{vLane}")
        e(f"v_lshlrev_b32 v{vT2}, 2, v{vT0}")
        e(f"v_xor_b32 v{vT1}, v{vT1}, v{vT2}")
        e(f"s_mov_b32 s36, {ldw}")
        e(f"v_mul_lo_u32 v{vBoff}, v{vT0}, s36")
        if kind == 'qkv':
            e("s_lshl_b32 s36, s25, 7")
            e("s_lshl_b32 s37, s25, 6")
            e("s_add_u32 s37, s37, 2048")
            e(f"v_lshlrev_b32 v{vT2}, 4, v{vT1}")
            e(f"v_add_u32 v{vT2}, s36, v{vT2}")
            e(f"v_and_b32 v{vT3}, 3, v{vT1}")
            e(f"v_lshlrev_b32 v{vT3}, 4, v{vT3}")
            e(f"v_add_u32 v{vT3}, s37, v{vT3}")
            e(f"v_cmp_gt_u32 vcc, 8, v{vT1}")
            e("s_nop 1")
            e(f"v_cndmask_b32 v{vT2}, v{vT3}, v{vT2}, vcc")
            e(f"v_add_u32 v{vBoff}, v{vBoff}, v{vT2}")
        else:
            e("s_mul_i32 s36, s25, 192")
            e(f"v_lshlrev_b32 v{vT2}, 4, v{vT1}")
            e(f"v_add_u32 v{vT2}, s36, v{vT2}")
            e(f"v_add_u32 v{vBoff}, v{vBoff}, v{vT2}")
        e(f"v_cmp_gt_u32 vcc, 12, v{vT1}")
        e("s_mov_b64 s[38:39], vcc")
    else:
        e(f"v_lshrrev_b32 v{vT0}, 3, v{vLane}")
        e(f"v_and_b32 v{vT1}, 7, v{vLane}")
        e(f"v_bfe_u32 v{vT2}, v{vLane}, 4, 1")
        e(f"v_lshlrev_b32 v{vT2}, 2, v{vT2}")
        e(f"v_xor_b32 v{vT1}, v{vT1}, v{vT2}")
        e(f"v_lshlrev_b32 v{vBoff}, 10, v{vT0}")
        e("s_lshl_b32 s36, s25, 7")
        e(f"v_lshlrev_b32 v{vT2}, 4, v{vT1}")
        e(f"v_add_u32 v{vT2}, s36, v{vT2}")
        e(f"v_add_u32 v{vBoff}, v{vBoff}, v{vT2}")
    if kind == 'qkv':
        e(f"v_lshrrev_b32 v{vT0}, 3, v{vLane}")
        e(f"v_lshrrev_b32 v{vT1}, 4, v{vLane}")
        e(f"v_and_b32 v{vT2}, 7, v{vLane}")
        e(f"v_xor_b32 v{vT3}, v{vT2}, v{vT1}")
        e(f"v_lshlrev_b32 v{vT3}, 4, v{vT3}")
        e(f"v_lshlrev_b32 v{vAoff}, 10, v{vT0}")
        e(f"v_add_u32 v{vAoff2}, 4, v{vT1}")
        e(f"v_xor_b32 v{vAoff2}, v{vT2}, v{vAoff2}")
        e(f"v_lshlrev_b32 v{vAoff2}, 4, v{vAoff2}")
        e(f"v_add_u32 v{vAoff2}, v{vAoff2}, v{vAoff}")
        e(f"v_add_u32 v{vAoff}, v{vAoff}, v{vT3}")
        e("s_lshl_b32 s51, s24, 17")
        e("s_lshl_b32 s52, s48, 15")
        e("s_add_u32 s51, s51, s52")
    else:
        e(f"v_lshlrev_b32 v{vAoff}, 4, v{vLane}")
        if NB == 4:
            e("s_add_u32 s51, s50, s48")
            e(f"s_mul_i32 s51, s51, {nks*1024}")
        else:
            e("s_lshr_b32 s52, s48, 1")
            e("s_add_u32 s51, s50, s52")
            e(f"s_mul_i32 s51, s51, {nks*1024}")
            e("s_and_b32 s52, s48, 1")
            e("s_lshl_b32 s52, s52, 12")
            e("s_add_u32 s51, s51, s52")
    e("s_lshl_b32 s53, s48, 12")
    e(f"s_mul_i32 s43, s48, {4*rows_per_dma*ldw}")
    e("s_waitcnt lgkmcnt(0)")
    srd(e, 16, 6, 7, K * ldw)
    if kind == 'qkv':
        srd(e, 12, 4, 5, S * D * 2)
    elif kind == 'wo':
        srd_off(e, 12, 10, 11, WS_O, S * D * 2)
    elif kind == 'w1':
        srd_off(e, 12, 10, 11, WS_H, S * D * 2)
    else:
        srd_off(e, 12, 10, 11, WS_H1, S * DFF * 2)

    e("s_lshl_b32 s58, s57, 11")
    e("s_add_u32 s53, s53, s58")
    if kind == 'qkv':
        e("s_lshl_b32 s59, s57, 14")
    else:
        e("s_lshl_b32 s59, s57, 11")
    e("s_add_u32 s51, s51, s59")
    e(f"s_mul_i32 s59, s57, {2*rows_per_dma*ldw}")
    e("s_add_u32 s43, s43, s59")

    def ld_issue(c):
        slot = c % NSLOT
        for i in range(2):
            e(f"s_add_u32 s44, s53, {slot*ST + i*1024}")
            e("s_mov_b32 m0, s44")
            if kind == 'qkv':
                e(f"s_add_u32 s45, s51, {c*KC*2 + i*8*1024}")
                va = vAoff if i % 2 == 0 else vAoff2
            else:
                e(f"s_add_u32 s45, s51, {c*KS*1024 + i*1024}")
                va = vAoff
            e.vm(('L', c), f"buffer_load_dwordx4 v{va}, s[12:15], s45 offen lds")
        if RS == 256:
            e("s_mov_b64 exec, s[38:39]")
        for i in range(2):
            e(f"s_add_u32 s44, s53, {slot*ST + A_ST + i*1024}")
            e("s_mov_b32 m0, s44")
            e(f"s_add_u32 s45, s43, {(c*KC + i*rows_per_dma)*ldw}")
            e.vm(('L', c), f"buffer_load_dwordx4 v{vBoff}, s[16:19], s45 offen lds")
        if RS == 256:
            e("s_mov_b64 exec, -1")

    if ln:
        e(f"v_lshrrev_b32 v{vT0}, 2, v{vLane}")
        e(f"v_and_b32 v{vT0}, 3, v{vT0}")
        e(f"v_lshlrev_b32 v{vT1}, 3, v{vH}")
        e(f"v_add_u32 v{vT1}, v{vT1}, v{vT0}")
        e(f"v_lshlrev_b32 v{vT1}, 8, v{vT1}")
        e(f"v_lshrrev_b32 v{vT2}, 4, v{vLane}")
        e(f"v_and_b32 v{vT2}, 1, v{vT2}")
        e(f"v_lshlrev_b32 v{vT2}, 5, v{vT2}")
        e(f"v_and_b32 v{vT3}, 3, v{vLane}")
        e(f"v_lshlrev_b32 v{vT3}, 3, v{vT3}")
        e(f"v_add_u32 v{vT1}, v{vT1}, v{vT2}")
        e(f"v_add_u32 v{vT1}, v{vT1}, v{vT3}")
        e("s_lshl_b32 s36, s48, 12")
        e(f"v_add_u32 v{vT1}, s36, v{vT1}")
        for t in range(NT):
            e(f"v_xor_b32 v{vT2}, {t}, v{vT0}")
            e(f"v_lshlrev_b32 v{vT2}, 6, v{vT2}")
            e(f"v_add_u32 v{VT+t}, v{vT1}, v{vT2}")
            e(f"v_add_u32 v{VT+3+t}, {2*ST}, v{VT+t}")
            e(f"v_mov_b32 v{vCs+t}, 0")
        e("s_mov_b32 s40, 0x3f803f80")
    e.stamp('l')
    for c in range(min(NSLOT - 1, nst)):
        ld_issue(c)
        e.stamp('l')
        if c < NSLOT - 2:
            e("s_barrier")
    for c in range(nst):
        e.vmwait([('L', c)])
        if c < 4:
            e.stamp('l')
        e("s_barrier")
        if c < 4:
            e.stamp('l')
        if c + NSLOT - 1 < nst:
            ld_issue(c + NSLOT - 1)
        if ln:
            slot = c % NSLOT
            e(f"s_cmp_lg_u32 s57, {c & 1}")
            e(f"s_cbranch_scc1 L_{name}_nocs{c}")
            for t in range(NT):
                vt = VT + t + (3 if slot >= 2 else 0)
                off = (slot % 2) * ST + A_ST
                bb = VB + t * 4
                e(f"ds_read_b64_tr_b16 v[{bb}:{bb+1}], v{vt} offset:{off}")
                e(f"ds_read_b64_tr_b16 v[{bb+2}:{bb+3}], v{vt} offset:{off + 4*RS}")
            e("s_waitcnt lgkmcnt(0)")
            for t in range(NT):
                bb = VB + t * 4
                for j in range(4):
                    e(f"v_dot2_f32_bf16 v{vCs+t}, v{bb+j}, s40, v{vCs+t}")
            e.label(f"L_{name}_nocs{c}")
    if ln:
        e("s_nop 2")
        for t in range(NT):
            half_combine(e, vCs + t, vT0)
        e(f"v_and_b32 v{vT0}, 31, v{vLane}")
        e(f"v_lshlrev_b32 v{vT0}, 2, v{vT0}")
        e(f"s_mul_i32 s36, s26, 384")
        e(f"s_add_u32 s36, s36, {LDS_SCR + 2048}")
        e(f"v_add_u32 v{vT1}, s36, v{vT0}")
        for t in range(NT):
            e(f"ds_write_b32 v{vT1}, v{vCs+t} offset:{t*128}")
        e("s_waitcnt lgkmcnt(0)")
        e("s_barrier")
    if os.environ.get("LSTAMP") == "1":
        e.dump_stamps(cfg['nwg'] - 1, 7, 0)
    e(f"s_branch {endl}")
    e.vmq = []

    e.label(f"L_{name}_compute")
    if NB == 4:
        e("s_add_u32 s50, s50, s48")
        e("s_mov_b32 s49, 0")
        e("s_mov_b32 s42, s48")
    else:
        e("s_and_b32 s42, s48, 1")
        e("s_add_u32 s50, s50, s42")
        e("s_lshr_b32 s49, s48, 1")
    e("s_lshl_b32 s27, s50, 5")
    e(f"v_and_b32 v{vT0}, 31, v{vLane}")
    e(f"v_add_u32 v{vRow}, s27, v{vT0}")
    if kind == 'qkv':
        e(f"v_lshrrev_b32 v{vT1}, 1, v{vT0}")
        e(f"v_and_b32 v{vT1}, 7, v{vT1}")
        e(f"v_lshlrev_b32 v{vT2}, 7, v{vT0}")
        e("s_lshl_b32 s36, s42, 12")
        e(f"v_add_u32 v{vT2}, s36, v{vT2}")
        for s_ in range(4):
            e(f"v_xor_b32 v{vT3}, {2*s_}, v{vT1}")
            e(f"v_xor_b32 v{vT3}, v{vT3}, v{vH}")
            e(f"v_lshlrev_b32 v{vT3}, 4, v{vT3}")
            e(f"v_add_u32 v{VR+s_}, v{vT2}, v{vT3}")
        VAq = VR + 36
        for s_ in range(4):
            e(f"v_mov_b32 v{VAq+s_}, v{VR+s_}")
            e(f"v_add_u32 v{VAq-4+s_}, {2*ST}, v{VR+s_}")
    else:
        e(f"v_lshlrev_b32 v{VAa}, 4, v{vLane}")
        e(f"s_mul_i32 s36, s42, {KS*1024}")
        e(f"v_add_u32 v{VAa}, s36, v{VAa}")
    e(f"v_lshrrev_b32 v{vT0}, 2, v{vLane}")
    e(f"v_and_b32 v{vT0}, 3, v{vT0}")
    e(f"v_lshlrev_b32 v{vT1}, 3, v{vH}")
    e(f"v_add_u32 v{vT1}, v{vT1}, v{vT0}")
    e(f"v_lshlrev_b32 v{vT1}, {RS.bit_length()-1}, v{vT1}")
    e(f"v_lshrrev_b32 v{vT2}, 4, v{vLane}")
    e(f"v_and_b32 v{vT2}, 1, v{vT2}")
    e(f"v_lshlrev_b32 v{vT2}, 5, v{vT2}")
    e(f"v_and_b32 v{vT3}, 3, v{vLane}")
    e(f"v_lshlrev_b32 v{vT3}, 3, v{vT3}")
    e(f"v_add_u32 v{vT1}, v{vT1}, v{vT2}")
    e(f"v_add_u32 v{vT1}, v{vT1}, v{vT3}")
    if RS == 256:
        for t in range(NT):
            e(f"v_xor_b32 v{vT2}, {t}, v{vT0}")
            e(f"v_lshlrev_b32 v{vT2}, 6, v{vT2}")
            e(f"v_add_u32 v{VT+t}, v{vT1}, v{vT2}")
            e(f"v_add_u32 v{VT+3+t}, {2*ST}, v{VT+t}")
    else:
        e(f"v_lshrrev_b32 v{vT2}, 1, v{vT0}")
        e(f"v_xor_b32 v{vT2}, s49, v{vT2}")
        e(f"v_lshlrev_b32 v{vT2}, 6, v{vT2}")
        e(f"v_add_u32 v{VT}, v{vT1}, v{vT2}")
        e(f"v_add_u32 v{VT+3}, {2*ST}, v{VT}")
    e(f"v_add_u32 v{VAa+1}, {2*ST}, v{VAa}")
    e("s_mov_b32 s40, 0x3f803f80")
    if ln:
        e(f"v_mov_b32 v{vSum}, 0")
        e(f"v_mov_b32 v{vSq}, 0")
    e("s_waitcnt lgkmcnt(0)")
    srd(e, 20, 10, 11, WS_SIZE)
    if kind == 'wo':
        srd(e, 28, 4, 5, S * D * 2)
        srd_off(e, 32, 10, 11, WS_H, S * D * 2)
    elif kind == 'w2':
        srd_off(e, 28, 10, 11, WS_H, S * D * 2)
        srd(e, 32, 54, 55, S * D * 2)
    elif kind == 'w1':
        srd_off(e, 32, 10, 11, WS_H1, S * DFF * 2)
    if kind in ('wo', 'w2'):
        e("s_lshl_b32 s37, s25, 1")
        e("s_add_u32 s37, s37, s49")
        e("s_lshl_b32 s36, s50, 15")
        e("s_lshl_b32 s41, s37, 11")
        e("s_add_u32 s36, s36, s41")
        fm, rm = (VE + 1, VE) if kind == 'wo' else (VE, VE + 1)
        e(f"v_lshlrev_b32 v{fm}, 4, v{vLane}")
        e(f"v_add_u32 v{fm}, s36, v{fm}")
        e(f"v_lshlrev_b32 v{vT0}, 10, v{vRow}")
        e(f"v_lshlrev_b32 v{vT1}, 4, v{vH}")
        e(f"v_add_u32 v{vT0}, v{vT0}, v{vT1}")
        e("s_lshl_b32 s36, s37, 6")
        e(f"v_add_u32 v{rm}, s36, v{vT0}")
        e.vm('R', f"buffer_load_dwordx4 v[{VRES}:{VRES+3}], v{VE}, s[28:31], 0 offen")
        e.vm('R', f"buffer_load_dwordx4 v[{VRES+4}:{VRES+7}], v{VE}, s[28:31], 0 offen offset:{32 if kind=='wo' else 1024}")
    e.stamp()

    def forms(t):
        return 'N' if (kind == 'qkv' and t == 2) else 'T'

    def frag_reads(c, s_, buf):
        slot = c % NSLOT
        hi = 3 if slot >= 2 else 0
        lo = (slot % 2) * ST
        if kind == 'qkv':
            va = VR + 36 + s_ - (4 if slot >= 2 else 0)
            e(f"ds_read_b128 v[{VA+buf*4}:{VA+buf*4+3}], v{va} offset:{lo}")
        else:
            va = VAa + (1 if slot >= 2 else 0)
            e(f"ds_read_b128 v[{VA+buf*4}:{VA+buf*4+3}], v{va} offset:{lo + s_*1024}")
        for t in range(NT):
            bb = VB + buf * NT * 4 + t * 4
            off = lo + A_ST + s_ * 16 * RS
            e(f"ds_read_b64_tr_b16 v[{bb}:{bb+1}], v{VT+hi+t} offset:{off}")
            e(f"ds_read_b64_tr_b16 v[{bb+2}:{bb+3}], v{VT+hi+t} offset:{off + 4*RS}")

    first = True
    nrd = 2 * NT + 1
    for _ in range(NSLOT - 2):
        e("s_barrier")
    for c in range(nst):
        ns = min(KS, nks - c * KS)
        e("s_barrier")
        if c < 3:
            e.stamp()
        if os.environ.get("NOCOMP") == "1" and c > 0:
            continue
        frag_reads(c, 0, 0)
        for s_ in range(ns):
            buf = s_ & 1
            if s_ + 1 < ns:
                frag_reads(c, s_ + 1, buf ^ 1)
                e(f"s_waitcnt lgkmcnt({nrd})")
            else:
                e("s_waitcnt lgkmcnt(0)")
            a = VA + buf * 4
            for t in range(NT):
                bb = VB + buf * NT * 4 + t * 4
                acc = VACC + t * 16
                cc = "0" if first else f"v[{acc}:{acc+15}]"
                if forms(t) == 'T':
                    e(f"v_mfma_f32_32x32x16_bf16 v[{acc}:{acc+15}], v[{bb}:{bb+3}], v[{a}:{a+3}], {cc}")
                else:
                    e(f"v_mfma_f32_32x32x16_bf16 v[{acc}:{acc+15}], v[{a}:{a+3}], v[{bb}:{bb+3}], {cc}")
                if ln:
                    if t == 0:
                        for j in range(4):
                            e(f"v_dot2_f32_bf16 v{vSum}, v{a+j}, s40, v{vSum}")
                    if t == 1:
                        for j in range(4):
                            e(f"v_dot2_f32_bf16 v{vSq}, v{a+j}, v{a+j}, v{vSq}")
            first = False
    e.stamp()
    e("s_nop 7")
    if ln:
        e("s_barrier")
        half_combine(e, vSum, vT0)
        half_combine(e, vSq, vT0)
        e(f"v_mul_f32 v{vSum}, {f2h(1.0/512)}, v{vSum}")
        e(f"v_mul_f32 v{vSq}, {f2h(1.0/512)}, v{vSq}")
        e(f"v_fma_f32 v{vSq}, -v{vSum}, v{vSum}, v{vSq}")
        e(f"v_max_f32 v{vSq}, 0, v{vSq}")
        rne_bf16(e, vSum, vT0)
        rne_bf16(e, vSq, vT0)
        e(f"v_add_f32 v{vSq}, 0x3727c5ac, v{vSq}")
        rne_bf16(e, vSq, vT0)
        e(f"v_sqrt_f32 v{vSq}, v{vSq}")
        e("s_nop 0")
        rne_bf16(e, vSq, vT0)
        e(f"v_rcp_f32 v{vSq}, v{vSq}")
        e("s_nop 0")
        e(f"v_sub_f32 v{VE}, 0, v{vSum}")
        e(f"v_mov_b32 v{VE+1}, v{VE}")
        e(f"v_mov_b32 v{VE+2}, v{vSq}")
        e(f"v_mov_b32 v{VE+3}, v{vSq}")
        e(f"v_and_b32 v{vT0}, 31, v{vLane}")
        e(f"v_lshlrev_b32 v{vT0}, 2, v{vT0}")
        e(f"v_add_u32 v{vT1}, {LDS_SCR + 2048}, v{vT0}")
        for jj in range(8):
            for t in range(NT):
                e(f"ds_read_b32 v{VR+jj*3+t}, v{vT1} offset:{jj*384 + t*128}")
        e("s_waitcnt lgkmcnt(0)")
        for t in range(NT):
            e(f"v_add_f32 v{vCs+t}, v{VR+t}, v{VR+3+t}")
            for jj in range(2, 8):
                e(f"v_add_f32 v{vCs+t}, v{vCs+t}, v{VR+jj*3+t}")
        e(f"s_lshl_b32 s47, s48, 9")
        e(f"s_add_u32 s47, s47, {LDS_SCR}")
        e(f"v_add_u32 v{vT1}, s47, v{vT0}")
        nT = 2 if kind == 'qkv' else 3
        for t in range(nT):
            e(f"ds_write_b32 v{vT1}, v{vCs+t} offset:{t*128}")
        if kind == 'qkv':
            e(f"ds_write_b32 v{vT1}, v{vSum} offset:256")
            e(f"ds_write_b32 v{vT1}, v{vSq} offset:384")
        e(f"v_lshlrev_b32 v{vT1}, 4, v{vH}")
        e(f"v_add_u32 v{vT1}, s47, v{vT1}")
        e("s_waitcnt lgkmcnt(0)")
        for t in range(nT):
            for q in range(4):
                e(f"ds_read_b128 v[{VR+t*16+q*4}:{VR+t*16+q*4+3}], v{vT1} offset:{t*128 + q*32}")
        e("s_waitcnt lgkmcnt(0)")
    e.stamp()
    for t in range(NT):
        acc = VACC + t * 16
        if forms(t) == 'T':
            if ln:
                for j in range(0, 16, 2):
                    e(f"v_pk_fma_f32 v[{acc+j}:{acc+j+1}], v[{VR+t*16+j}:{VR+t*16+j+1}], v[{VE}:{VE+1}], v[{acc+j}:{acc+j+1}]")
                    e(f"v_pk_mul_f32 v[{acc+j}:{acc+j+1}], v[{acc+j}:{acc+j+1}], v[{VE+2}:{VE+3}]")
            for q in range(4):
                e(f"v_cvt_pk_bf16_f32 v{acc+2*q}, v{acc+4*q}, v{acc+4*q+1}")
                e(f"v_cvt_pk_bf16_f32 v{acc+2*q+1}, v{acc+4*q+2}, v{acc+4*q+3}")
            if kind == 'w1':
                for j in range(8):
                    e(f"v_pk_max_i16 v{acc+j}, v{acc+j}, 0")
            e("s_nop 1")
            for pr in range(2):
                e(f"v_permlane32_swap_b32 v{acc+4*pr}, v{acc+4*pr+2}")
                e(f"v_permlane32_swap_b32 v{acc+4*pr+1}, v{acc+4*pr+3}")
            e("s_nop 1")
            if kind == 'qkv':
                if t == 0:
                    e(f"v_lshlrev_b32 v{vT2}, 5, v{vRow}")
                    e(f"v_lshlrev_b32 v{vT3}, 4, v{vH}")
                    e(f"v_add_u32 v{vT2}, v{vT2}, v{vT3}")
                e(f"s_lshl_b32 s36, s25, 2")
                e(f"s_add_u32 s36, s36, {2*t}")
                e(f"s_lshl_b32 s36, s36, 16")
                e(f"s_add_u32 s37, s36, 65536")
                e(f"buffer_store_dwordx4 v[{acc}:{acc+3}], v{vT2}, s[20:23], s36 offen")
                e(f"buffer_store_dwordx4 v[{acc+4}:{acc+7}], v{vT2}, s[20:23], s37 offen")
            elif kind == 'w1':
                e(f"s_mul_i32 s36, s25, 3")
                e(f"s_add_u32 s36, s36, {t}")
                e(f"s_cmp_ge_u32 s36, 43")
                e(f"s_cbranch_scc1 L_{name}_skip{t}")
                e(f"s_lshl_b32 s36, s36, 11")
                e(f"s_mul_i32 s37, s50, {86*1024}")
                e(f"s_add_u32 s36, s36, s37")
                e(f"v_lshlrev_b32 v{vT2}, 4, v{vLane}")
                e(f"buffer_store_dwordx4 v[{acc}:{acc+3}], v{vT2}, s[32:35], s36 offen")
                e(f"buffer_store_dwordx4 v[{acc+4}:{acc+7}], v{vT2}, s[32:35], s36 offen offset:1024")
                e.label(f"L_{name}_skip{t}")
            else:
                e.vmwait(['R'])
                for j in range(8):
                    a_ = acc + j
                    r_ = VRES + j
                    e(f"v_lshlrev_b32 v{vT0}, 16, v{a_}")
                    e(f"v_and_b32 v{vT1}, 0xffff0000, v{a_}")
                    e(f"v_lshlrev_b32 v{vT2}, 16, v{r_}")
                    e(f"v_and_b32 v{vT3}, 0xffff0000, v{r_}")
                    e(f"v_add_f32 v{vT0}, v{vT0}, v{vT2}")
                    e(f"v_add_f32 v{vT1}, v{vT1}, v{vT3}")
                    e(f"v_cvt_pk_bf16_f32 v{a_}, v{vT0}, v{vT1}")
                o2 = 1024 if kind == 'wo' else 32
                e(f"buffer_store_dwordx4 v[{acc}:{acc+3}], v{VE+1}, s[32:35], 0 offen")
                e(f"buffer_store_dwordx4 v[{acc+4}:{acc+7}], v{VE+1}, s[32:35], 0 offen offset:{o2}")
        else:
            for q in range(4):
                e(f"ds_read_b128 v[{VR+q*4}:{VR+q*4+3}], v{vT1} offset:{256 + q*32}")
                e(f"ds_read_b128 v[{VR+16+q*4}:{VR+16+q*4+3}], v{vT1} offset:{384 + q*32}")
            e("s_waitcnt lgkmcnt(0)")
            for j in range(16):
                e(f"v_fma_f32 v{acc+j}, -v{VR+j}, v{vCs+t}, v{acc+j}")
                e(f"v_mul_f32 v{acc+j}, v{VR+16+j}, v{acc+j}")
            for q in range(4):
                e(f"v_cvt_pk_bf16_f32 v{acc+2*q}, v{acc+4*q}, v{acc+4*q+1}")
                e(f"v_cvt_pk_bf16_f32 v{acc+2*q+1}, v{acc+4*q+2}, v{acc+4*q+3}")
            e(f"v_and_b32 v{vT2}, 15, v{vLane}")
            e(f"v_lshlrev_b32 v{vT2}, 5, v{vT2}")
            e(f"v_lshlrev_b32 v{vT3}, 4, v{vH}")
            e(f"v_add_u32 v{vT2}, v{vT2}, v{vT3}")
            e(f"v_bfe_u32 v{vT3}, v{vLane}, 4, 1")
            e(f"v_lshlrev_b32 v{vT3}, 16, v{vT3}")
            e(f"v_add_u32 v{vT2}, v{vT2}, v{vT3}")
            e(f"s_lshl_b32 s36, s25, 17")
            e(f"s_lshl_b32 s37, s27, 5")
            e(f"s_add_u32 s36, s36, s37")
            e(f"s_add_u32 s36, s36, {WS_VT}")
            e(f"buffer_store_dwordx4 v[{acc}:{acc+3}], v{vT2}, s[20:23], s36 offen")
            e(f"buffer_store_dwordx4 v[{acc+4}:{acc+7}], v{vT2}, s[20:23], s36 offen offset:512")
    e.stamp()
    e("s_waitcnt vmcnt(0)")
    e.stamp()
    if os.environ.get("LSTAMP") != "1":
        e.dump_stamps(cfg['nwg'] - 1, 11, 8)
    e.label(endl)
    e("s_endpgm")
    e.vmq = []
    return lds_total, nvgpr


def attn_kernel(e, name):
    endl = f"L_{name}_end"
    vLane, vH, vT0, vT1, vT2, vT3 = 1, 2, 3, 4, 5, 6
    vQoff, vKa, vVa = 7, 8, 9
    vMax, vSumv = 10, 11
    vQi = 12
    VQ = 16
    VK = 20
    VS = 56
    VV = 200
    VO = 20
    VP = 36
    LK = 0
    LV = 16384
    e.label(name)
    e("s_cmp_ge_u32 s2, 256")
    e(f"s_cbranch_scc1 {endl}")
    e.stamp()
    e("s_load_dwordx2 s[8:9], s[0:1], 64")
    e("s_and_b32 s24, s2, 7")
    e("s_lshl_b32 s24, s24, 2")
    e("s_lshr_b32 s25, s2, 3")
    e("s_and_b32 s26, s25, 3")
    e("s_add_u32 s24, s24, s26")
    e("s_lshr_b32 s25, s2, 5")
    e(f"v_and_b32 v{vLane}, 63, v0")
    e(f"v_lshrrev_b32 v{vT0}, 6, v0")
    e("s_nop 0")
    e(f"v_readfirstlane_b32 s26, v{vT0}")
    e(f"v_lshrrev_b32 v{vH}, 5, v{vLane}")
    e("s_lshl_b32 s27, s25, 3")
    e("s_add_u32 s27, s27, s26")
    e("s_mov_b32 s29, s27")
    e("s_lshl_b32 s27, s27, 5")
    e("s_waitcnt lgkmcnt(0)")
    e("s_lshl_b32 s28, s24, 16")
    e("s_add_u32 s12, s8, s28")
    e("s_addc_u32 s13, s9, 0")
    e("s_and_b32 s13, s13, 0xffff")
    e("s_mov_b32 s14, 65536")
    e("s_mov_b32 s15, 0x00020000")
    e(f"s_add_u32 s16, s12, {32*65536}")
    e("s_addc_u32 s17, s13, 0")
    e("s_and_b32 s17, s17, 0xffff")
    e("s_mov_b32 s18, 65536")
    e("s_mov_b32 s19, 0x00020000")
    e(f"s_add_u32 s20, s12, {WS_VT}")
    e("s_addc_u32 s21, s13, 0")
    e("s_and_b32 s21, s21, 0xffff")
    e("s_mov_b32 s22, 65536")
    e("s_mov_b32 s23, 0x00020000")
    srd_off(e, 32, 8, 9, WS_O, S * D * 2)
    e(f"v_lshlrev_b32 v{vT0}, 4, v{vLane}")
    e("s_lshl_b32 s30, s25, 13")
    e("s_sub_u32 s30, s30, 8192")
    e("s_lshl_b32 s31, s26, 11")
    e("s_add_u32 s30, s30, s31")
    e(f"v_add_u32 v{vT1}, s30, v{vT0}")
    e(f"v_add_u32 v{vT2}, 1024, v{vT1}")
    e("s_mov_b32 m0, s31")
    e("s_nop 0")
    e.vm('L', f"buffer_load_dwordx4 v{vT1}, s[16:19], 0 offen lds")
    e("s_add_u32 s36, s31, 1024")
    e("s_mov_b32 m0, s36")
    e("s_nop 0")
    e.vm('L', f"buffer_load_dwordx4 v{vT2}, s[16:19], 0 offen lds")
    e(f"s_add_u32 s36, s31, {LV}")
    e("s_mov_b32 m0, s36")
    e("s_nop 0")
    e.vm('L', f"buffer_load_dwordx4 v{vT1}, s[20:23], 0 offen lds")
    e(f"s_add_u32 s36, s31, {LV+1024}")
    e("s_mov_b32 m0, s36")
    e("s_nop 0")
    e.vm('L', f"buffer_load_dwordx4 v{vT2}, s[20:23], 0 offen lds")
    e(f"v_and_b32 v{vT0}, 31, v{vLane}")
    e(f"v_add_u32 v{vQi}, s27, v{vT0}")
    e(f"v_lshlrev_b32 v{vQoff}, 5, v{vQi}")
    e(f"v_lshlrev_b32 v{vT1}, 4, v{vH}")
    e(f"v_add_u32 v{vQoff}, v{vQoff}, v{vT1}")
    e.vm('L', f"buffer_load_dwordx4 v[{VQ}:{VQ+3}], v{vQoff}, s[12:15], 0 offen")
    if PREF:
        e("s_load_dwordx2 s[40:41], s[0:1], 16")
        e("s_load_dwordx4 s[44:47], s[0:1], 32")
        e("s_lshl_b32 s38, s2, 3")
        e("s_add_u32 s38, s38, s26")
        e("s_lshl_b32 s38, s38, 10")
        e(f"v_lshlrev_b32 v{vT3}, 4, v{vLane}")
        e("s_waitcnt lgkmcnt(0)")
        for (lo, hi, sz) in ((40, 41, 512*1024), (44, 45, 1376*1024), (46, 47, 1376*1024)):
            e(f"s_mov_b32 s48, s{lo}")
            e(f"s_and_b32 s49, s{hi}, 0xffff")
            e(f"s_mov_b32 s50, {sz}")
            e("s_mov_b32 s51, 0x00020000")
            e.vm('P', f"buffer_load_dwordx4 v[240:243], v{vT3}, s[48:51], s38 offen")
    e(f"v_lshlrev_b32 v{vKa}, 5, v{vT0}")
    e(f"v_add_u32 v{vKa}, v{vKa}, v{vT1}")
    e("s_lshl_b32 s36, s26, 10")
    e(f"v_add_u32 v{vKa}, s36, v{vKa}")
    e(f"v_and_b32 v{vT0}, 15, v{vLane}")
    e(f"v_lshlrev_b32 v{vVa}, 5, v{vT0}")
    e(f"v_add_u32 v{vVa}, v{vVa}, v{vT1}")
    e(f"s_add_u32 s36, s36, {LV}")
    e(f"v_add_u32 v{vVa}, s36, v{vVa}")
    e(f"v_and_b32 v{vT0}, 16, v{vLane}")
    e(f"v_cmp_ne_u32 vcc, 0, v{vT0}")
    e(f"v_mov_b32 v{vT0}, 32768")
    e("s_nop 1")
    e(f"v_cndmask_b32 v{vVa}, v{vVa}, v{vT0}, vcc")
    e(f"v_mov_b32 v{VS}, 0x3f803f80")
    e(f"v_mov_b32 v{VS+1}, 0x3f803f80")
    e(f"v_mov_b32 v{VS+2}, 0x3f803f80")
    e(f"v_mov_b32 v{VS+3}, 0x3f803f80")
    e(f"v_lshlrev_b32 v{vT0}, 4, v0")
    e(f"ds_write_b128 v{vT0}, v[{VS}:{VS+3}] offset:32768")
    e(f"v_cmp_gt_u32 vcc, 128, v0")
    e("s_and_saveexec_b64 s[52:53], vcc")
    e(f"ds_write_b128 v{vT0}, v[{VS}:{VS+3}] offset:{32768+8192}")
    e("s_mov_b64 exec, s[52:53]")
    e("s_waitcnt lgkmcnt(0)")
    e.stamp()
    e.vmwait(['L'])
    e("s_barrier")
    e.stamp()
    for t in range(9):
        e(f"ds_read_b128 v[{VK+4*t}:{VK+4*t+3}], v{vKa} offset:{t*1024}")
    for t in range(9):
        e(f"s_waitcnt lgkmcnt({8-t})")
        e(f"v_mfma_f32_32x32x16_bf16 v[{VS+16*t}:{VS+16*t+15}], v[{VK+4*t}:{VK+4*t+3}], v[{VQ}:{VQ+3}], 0")
    for i in range(8):
        e(f"ds_read_b128 v[{VV+4*i}:{VV+4*i+3}], v{vVa} offset:{i*512}")
    e("s_nop 15")
    e.stamp()
    e(f"v_and_b32 v{vT0}, 31, v{vLane}")
    e(f"v_lshlrev_b32 v{vT1}, 2, v{vH}")
    e(f"v_sub_u32 v{vT0}, v{vT0}, v{vT1}")
    e(f"v_mov_b32 v{vT2}, 0xff800000")
    for r in range(16):
        c = (r & 3) + 8 * (r >> 2)
        e(f"v_cmp_gt_i32 vcc, {c}, v{vT0}")
        e("s_nop 1")
        e(f"v_cndmask_b32 v{VS+r}, v{vT2}, v{VS+r}, vcc")
        e(f"v_cndmask_b32 v{VS+128+r}, v{VS+128+r}, v{vT2}, vcc")
    e("s_cmp_ge_u32 s29, 8")
    e(f"s_cbranch_scc1 L_{name}_allok")
    for t in range(8):
        e(f"s_cmp_ge_u32 s29, {8 - t}")
        e(f"s_cbranch_scc1 L_{name}_ok{t}")
        for r in range(16):
            e(f"v_mov_b32 v{VS+16*t+r}, v{vT2}")
        e.label(f"L_{name}_ok{t}")
    e.label(f"L_{name}_allok")
    e.stamp()
    e(f"v_max3_f32 v{vMax}, v{VS}, v{VS+1}, v{VS+2}")
    i = 3
    while i + 1 < 144:
        e(f"v_max3_f32 v{vMax}, v{vMax}, v{VS+i}, v{VS+i+1}")
        i += 2
    e(f"v_max_f32 v{vMax}, v{vMax}, v{VS+143}")
    e(f"v_mov_b32 v{vT0}, v{vMax}")
    e("s_nop 1")
    e(f"v_permlane32_swap_b32 v{vMax}, v{vT0}")
    e("s_nop 1")
    e(f"v_max_f32 v{vMax}, v{vMax}, v{vT0}")
    c = 0.25 * 1.4426950408889634
    e(f"s_mov_b32 s30, {f2h(c)}")
    e(f"v_mul_f32 v{vMax}, s30, v{vMax}")
    e(f"v_mov_b32 v{vSumv}, 0")
    for i in range(144):
        e(f"v_fma_f32 v{VS+i}, v{VS+i}, s30, -v{vMax}")
        e(f"v_exp_f32 v{VS+i}, v{VS+i}")
    e.stamp()
    for i in range(18):
        t, a = i // 2, i % 2
        b = VV + (i % 8) * 4
        s0 = VS + 16 * t + 8 * a
        pb = VP + (i % 4) * 4
        for j in range(4):
            e(f"v_cvt_pk_bf16_f32 v{pb+j}, v{s0+2*j}, v{s0+2*j+1}")
        nout = min(i + 7, 17) - i
        e(f"s_waitcnt lgkmcnt({nout})")
        e("s_nop 0")
        cc = "0" if i == 0 else f"v[{VO}:{VO+15}]"
        e(f"v_mfma_f32_32x32x16_bf16 v[{VO}:{VO+15}], v[{b}:{b+3}], v[{pb}:{pb+3}], {cc}")
        if i + 8 < 18:
            e(f"ds_read_b128 v[{b}:{b+3}], v{vVa} offset:{(i+8)*512}")
    e.stamp()
    e("s_nop 15")
    e(f"v_rcp_f32 v{vSumv}, v{VO+8}")
    e("s_nop 0")
    for j in range(8):
        e(f"v_mul_f32 v{VO+j}, v{vSumv}, v{VO+j}")
    e(f"v_cvt_pk_bf16_f32 v{VP}, v{VO}, v{VO+1}")
    e(f"v_cvt_pk_bf16_f32 v{VP+1}, v{VO+2}, v{VO+3}")
    e(f"v_cvt_pk_bf16_f32 v{VP+2}, v{VO+4}, v{VO+5}")
    e(f"v_cvt_pk_bf16_f32 v{VP+3}, v{VO+6}, v{VO+7}")
    e("s_nop 1")
    e(f"v_permlane32_swap_b32 v{VP}, v{VP+2}")
    e(f"v_permlane32_swap_b32 v{VP+1}, v{VP+3}")
    e("s_nop 1")
    e(f"v_lshlrev_b32 v{vT0}, 4, v{vLane}")
    e("s_lshl_b32 s28, s29, 5")
    e("s_add_u32 s28, s28, s24")
    e("s_lshl_b32 s28, s28, 10")
    e(f"buffer_store_dwordx4 v[{VP}:{VP+3}], v{vT0}, s[32:35], s28 offen")
    e.stamp()
    e("s_waitcnt vmcnt(0)")
    e.stamp()
    e.dump_stamps(255, 7)
    e.label(endl)
    e("s_endpgm")
    e.vmq = []


def kd(name, vgpr=256):
    vg = ((vgpr + 7) // 8) * 8
    return f""".p2align 6
.amdhsa_kernel {name}
  .amdhsa_next_free_vgpr {vg}
  .amdhsa_next_free_sgpr 100
  .amdhsa_accum_offset {vg}
  .amdhsa_group_segment_fixed_size 0
  .amdhsa_kernarg_size 72
  .amdhsa_user_sgpr_count 2
  .amdhsa_user_sgpr_kernarg_segment_ptr 1
  .amdhsa_system_sgpr_workgroup_id_x 1
.end_amdhsa_kernel
"""


def main():
    hdr = open(f"cdna_kernels/{NAME}.s.ref").read().split("; Override launch")[0]
    kernels = []
    body = ""
    for kind in ['qkv', 'attn', 'wo', 'w1', 'w2']:
        nm = f"k{kind}_kernel"
        e = Em()
        if kind == 'attn':
            attn_kernel(e, nm)
            lds, grid, blk, vg = 32768 + 10240, 256, 512, 256
        else:
            lds, vg = gemm_kernel(e, nm, kind)
            grid = {'qkv': 256, 'wo': 256, 'w1': 240, 'w2': 256}[kind]
            blk = 768
        kernels.append((nm, grid, blk, lds, vg))
        body += f".globl {nm}\n.p2align 8\n.type {nm},@function\n" + e.text()
    out = hdr
    for nm, grid, blk, lds, vg in kernels:
        out += f"; @launch kernel={nm} grid=({grid},1,1) block=({blk},1,1) lds={lds}\n"
    out += '.amdgcn_target "amdgcn-amd-amdhsa--gfx950"\n.text\n' + body
    out += '.section .rodata,"a"\n'
    for nm, grid, blk, lds, vg in kernels:
        out += kd(nm, vg)
    open(sys.argv[1] if len(sys.argv) > 1 else f"cdna_kernels/{NAME}.s", "w").write(out)


main()
```

```python
import sys, struct

def f2h(x):
    return "0x%08x" % struct.unpack("<I", struct.pack("<f", x))[0]

import os
STAMP = os.environ.get("STAMP", "0") == "1"
PREF = os.environ.get("PREF", "1") == "1"
NAME = "sequential_preLN__sliding_block__dense_activation_relu__prompt"
S = 2048
D = 512
DFF = 1376
MB = 1 << 20
WS_QK = 0
WS_VT = 4 * MB
WS_O = 8 * MB
WS_H = 12 * MB
WS_H1 = 16 * MB
WS_ST = 24 * MB
WS_SIZE = 32 * MB


class Em:
    def __init__(self):
        self.l = []
        self.vmq = []
        self.nst = 0

    def __call__(self, s):
        self.l.append("    " + s)

    def label(self, s):
        self.l.append(s + ":")

    def vm(self, tag, s):
        self.l.append("    " + s)
        self.vmq.append(tag)

    def vmwait(self, tags):
        idx = -1
        for i, t in enumerate(self.vmq):
            if t in tags:
                idx = i
        if idx < 0:
            return
        n = len(self.vmq) - idx - 1
        assert n <= 63
        self(f"s_waitcnt vmcnt({n})")
        self.vmq = self.vmq[idx + 1:]

    def stamp(self, who='c'):
        if not STAMP:
            return
        if (os.environ.get("LSTAMP") == "1") != (who == 'l') and who != 'b':
            return
        i = self.nst
        self.nst += 1
        assert i < 16
        self(f"s_memtime s[{64+2*i}:{65+2*i}]")
        self("s_waitcnt lgkmcnt(0)")

    def dump_stamps(self, lastwg, lastwave=15, firstwave=0):
        if not STAMP:
            return
        self("s_load_dwordx2 s[56:57], s[0:1], 56")
        self("s_waitcnt lgkmcnt(0)")
        self("s_mov_b32 s60, s56")
        self("s_and_b32 s61, s57, 0xffff")
        self("s_mov_b32 s62, 256")
        self("s_mov_b32 s63, 0x00020000")
        self("s_mov_b32 s58, 4096")
        self("s_cmp_eq_u32 s2, 0")
        self("s_cselect_b32 s59, 0, 4096")
        self(f"s_cmp_eq_u32 s26, {firstwave}")
        self("s_cselect_b32 s59, s59, 4096")
        self(f"s_cmp_eq_u32 s2, 0")
        self("s_cselect_b32 s58, 128, s58")
        self(f"s_cmp_eq_u32 s26, {lastwave}")
        self("s_cselect_b32 s58, s58, 4096")
        self("s_min_u32 s58, s58, s59")
        self("v_mov_b32 v2, s58")
        for i in range(self.nst):
            self(f"v_mov_b32 v0, s{64+2*i}")
            self(f"v_mov_b32 v1, s{65+2*i}")
            self(f"buffer_store_dwordx2 v[0:1], v2, s[60:63], 0 offen offset:{8*i}")
            self("s_waitcnt vmcnt(0)")

    def text(self):
        return "\n".join(self.l) + "\n"


def srd(e, d, lo, hi, size):
    e(f"s_mov_b32 s{d}, s{lo}")
    e(f"s_and_b32 s{d+1}, s{hi}, 0xffff")
    e(f"s_mov_b32 s{d+2}, {size}")
    e(f"s_mov_b32 s{d+3}, 0x00020000")


def srd_off(e, d, lo, hi, off, size):
    e(f"s_add_u32 s{d}, s{lo}, {off}")
    e(f"s_addc_u32 s{d+1}, s{hi}, 0")
    e(f"s_and_b32 s{d+1}, s{d+1}, 0xffff")
    e(f"s_mov_b32 s{d+2}, {size}")
    e(f"s_mov_b32 s{d+3}, 0x00020000")


def rne_bf16(e, v, tmp):
    e(f"v_cvt_pk_bf16_f32 v{tmp}, v{v}, v{v}")
    e(f"v_lshlrev_b32 v{v}, 16, v{tmp}")


def half_combine(e, v, tmp):
    e(f"v_mov_b32 v{tmp}, v{v}")
    e("s_nop 1")
    e(f"v_permlane32_swap_b32 v{v}, v{tmp}")
    e("s_nop 1")
    e(f"v_add_f32 v{v}, v{v}, v{tmp}")


def gemm_kernel(e, name, kind):
    cfg = {
        'qkv': dict(K=512, NT=3, RS=256, KC=64, ln=True, ldw=3072, wslot=8, nwg=256, NB=4),
        'wo': dict(K=512, NT=1, RS=128, KC=128, ln=False, ldw=1024, wslot=16, nwg=256, NB=2),
        'w1': dict(K=512, NT=3, RS=256, KC=64, ln=True, ldw=2752, wslot=32, nwg=240, NB=4),
        'w2': dict(K=1376, NT=1, RS=128, KC=128, ln=False, ldw=1024, wslot=40, nwg=256, NB=2),
    }[kind]
    K, NT, RS, KC, ln, ldw, NB = cfg['K'], cfg['NT'], cfg['RS'], cfg['KC'], cfg['ln'], cfg['ldw'], cfg['NB']
    nks = K // 16
    KS = KC // 16
    nst = (nks + KS - 1) // KS
    NSLOT = int(os.environ.get("NSLOT", "4"))
    A_ST = 16384
    B_ST = 16384
    ST = A_ST + B_ST
    LDS_SCR = NSLOT * ST
    lds_total = LDS_SCR + 2048 + 8 * 384
    rows_per_dma = 1024 // RS
    vLane, vAoff, vBoff = 1, 2, 3
    vSum, vSq = 4, 5
    vCs = 6
    vT0, vT1, vT2, vT3 = 9, 10, 11, 12
    vH = 13
    vRow = 14
    vAoff2 = 15
    VB = 16
    VT = 40
    VE = 46
    VA = 52
    VAa = 60
    VACC = 64
    VR = 112
    VRES = 112
    nvgpr = 160
    endl = f"L_{name}_end"

    e.label(name)
    e(f"s_cmp_ge_u32 s2, {cfg['nwg']}")
    e(f"s_cbranch_scc1 {endl}")
    e.stamp('b')
    e("s_load_dwordx2 s[4:5], s[0:1], 0")
    e(f"s_load_dwordx2 s[6:7], s[0:1], {cfg['wslot']}")
    e("s_load_dwordx4 s[8:11], s[0:1], 56")
    e("s_load_dwordx2 s[54:55], s[0:1], 48")
    e("s_and_b32 s24, s2, 7")
    e("s_lshr_b32 s25, s2, 3")
    if NB == 4:
        e("s_and_b32 s26, s25, 1")
        e("s_lshl_b32 s24, s24, 1")
        e("s_add_u32 s24, s24, s26")
        e("s_lshr_b32 s25, s25, 1")
        e("s_lshl_b32 s50, s24, 2")
    else:
        e("s_and_b32 s26, s25, 3")
        e("s_lshl_b32 s24, s24, 2")
        e("s_add_u32 s24, s24, s26")
        e("s_lshr_b32 s25, s25, 2")
        e("s_lshl_b32 s50, s24, 1")
    e(f"v_and_b32 v{vLane}, 63, v0")
    e(f"v_lshrrev_b32 v{vT0}, 6, v0")
    e("s_nop 0")
    e(f"v_readfirstlane_b32 s26, v{vT0}")
    e(f"v_lshrrev_b32 v{vH}, 5, v{vLane}")
    e("s_and_b32 s48, s26, 3")
    e("s_lshr_b32 s57, s26, 2")
    e("s_cmp_ge_u32 s26, 8")
    e(f"s_cbranch_scc1 L_{name}_compute")

    if RS == 256:
        e(f"v_lshrrev_b32 v{vT0}, 4, v{vLane}")
        e(f"v_and_b32 v{vT1}, 15, v{vLane}")
        e(f"v_lshlrev_b32 v{vT2}, 2, v{vT0}")
        e(f"v_xor_b32 v{vT1}, v{vT1}, v{vT2}")
        e(f"s_mov_b32 s36, {ldw}")
        e(f"v_mul_lo_u32 v{vBoff}, v{vT0}, s36")
        if kind == 'qkv':
            e("s_lshl_b32 s36, s25, 7")
            e("s_lshl_b32 s37, s25, 6")
            e("s_add_u32 s37, s37, 2048")
            e(f"v_lshlrev_b32 v{vT2}, 4, v{vT1}")
            e(f"v_add_u32 v{vT2}, s36, v{vT2}")
            e(f"v_and_b32 v{vT3}, 3, v{vT1}")
            e(f"v_lshlrev_b32 v{vT3}, 4, v{vT3}")
            e(f"v_add_u32 v{vT3}, s37, v{vT3}")
            e(f"v_cmp_gt_u32 vcc, 8, v{vT1}")
            e("s_nop 1")
            e(f"v_cndmask_b32 v{vT2}, v{vT3}, v{vT2}, vcc")
            e(f"v_add_u32 v{vBoff}, v{vBoff}, v{vT2}")
        else:
            e("s_mul_i32 s36, s25, 192")
            e(f"v_lshlrev_b32 v{vT2}, 4, v{vT1}")
            e(f"v_add_u32 v{vT2}, s36, v{vT2}")
            e(f"v_add_u32 v{vBoff}, v{vBoff}, v{vT2}")
        e(f"v_cmp_gt_u32 vcc, 12, v{vT1}")
        e("s_mov_b64 s[38:39], vcc")
    else:
        e(f"v_lshrrev_b32 v{vT0}, 3, v{vLane}")
        e(f"v_and_b32 v{vT1}, 7, v{vLane}")
        e(f"v_bfe_u32 v{vT2}, v{vLane}, 4, 1")
        e(f"v_lshlrev_b32 v{vT2}, 2, v{vT2}")
        e(f"v_xor_b32 v{vT1}, v{vT1}, v{vT2}")
        e(f"v_lshlrev_b32 v{vBoff}, 10, v{vT0}")
        e("s_lshl_b32 s36, s25, 7")
        e(f"v_lshlrev_b32 v{vT2}, 4, v{vT1}")
        e(f"v_add_u32 v{vT2}, s36, v{vT2}")
        e(f"v_add_u32 v{vBoff}, v{vBoff}, v{vT2}")
    if kind == 'qkv':
        e(f"v_lshrrev_b32 v{vT0}, 3, v{vLane}")
        e(f"v_lshrrev_b32 v{vT1}, 4, v{vLane}")
        e(f"v_and_b32 v{vT2}, 7, v{vLane}")
        e(f"v_xor_b32 v{vT3}, v{vT2}, v{vT1}")
        e(f"v_lshlrev_b32 v{vT3}, 4, v{vT3}")
        e(f"v_lshlrev_b32 v{vAoff}, 10, v{vT0}")
        e(f"v_add_u32 v{vAoff2}, 4, v{vT1}")
        e(f"v_xor_b32 v{vAoff2}, v{vT2}, v{vAoff2}")
        e(f"v_lshlrev_b32 v{vAoff2}, 4, v{vAoff2}")
        e(f"v_add_u32 v{vAoff2}, v{vAoff2}, v{vAoff}")
        e(f"v_add_u32 v{vAoff}, v{vAoff}, v{vT3}")
        e("s_lshl_b32 s51, s24, 17")
        e("s_lshl_b32 s52, s48, 15")
        e("s_add_u32 s51, s51, s52")
    else:
        e(f"v_lshlrev_b32 v{vAoff}, 4, v{vLane}")
        if NB == 4:
            e("s_add_u32 s51, s50, s48")
            e(f"s_mul_i32 s51, s51, {nks*1024}")
        else:
            e("s_lshr_b32 s52, s48, 1")
            e("s_add_u32 s51, s50, s52")
            e(f"s_mul_i32 s51, s51, {nks*1024}")
            e("s_and_b32 s52, s48, 1")
            e("s_lshl_b32 s52, s52, 12")
            e("s_add_u32 s51, s51, s52")
    e("s_lshl_b32 s53, s48, 12")
    e(f"s_mul_i32 s43, s48, {4*rows_per_dma*ldw}")
    e("s_waitcnt lgkmcnt(0)")
    srd(e, 16, 6, 7, K * ldw)
    if kind == 'qkv':
        srd(e, 12, 4, 5, S * D * 2)
    elif kind == 'wo':
        srd_off(e, 12, 10, 11, WS_O, S * D * 2)
    elif kind == 'w1':
        srd_off(e, 12, 10, 11, WS_H, S * D * 2)
    else:
        srd_off(e, 12, 10, 11, WS_H1, S * DFF * 2)

    e("s_lshl_b32 s58, s57, 11")
    e("s_add_u32 s53, s53, s58")
    if kind == 'qkv':
        e("s_lshl_b32 s59, s57, 14")
    else:
        e("s_lshl_b32 s59, s57, 11")
    e("s_add_u32 s51, s51, s59")
    e(f"s_mul_i32 s59, s57, {2*rows_per_dma*ldw}")
    e("s_add_u32 s43, s43, s59")

    def ld_issue(c):
        slot = c % NSLOT
        for i in range(2):
            e(f"s_add_u32 s44, s53, {slot*ST + i*1024}")
            e("s_mov_b32 m0, s44")
            if kind == 'qkv':
                e(f"s_add_u32 s45, s51, {c*KC*2 + i*8*1024}")
                va = vAoff if i % 2 == 0 else vAoff2
            else:
                e(f"s_add_u32 s45, s51, {c*KS*1024 + i*1024}")
                va = vAoff
            e.vm(('L', c), f"buffer_load_dwordx4 v{va}, s[12:15], s45 offen lds")
        if RS == 256:
            e("s_mov_b64 exec, s[38:39]")
        for i in range(2):
            e(f"s_add_u32 s44, s53, {slot*ST + A_ST + i*1024}")
            e("s_mov_b32 m0, s44")
            e(f"s_add_u32 s45, s43, {(c*KC + i*rows_per_dma)*ldw}")
            e.vm(('L', c), f"buffer_load_dwordx4 v{vBoff}, s[16:19], s45 offen lds")
        if RS == 256:
            e("s_mov_b64 exec, -1")

    if ln:
        e(f"v_lshrrev_b32 v{vT0}, 2, v{vLane}")
        e(f"v_and_b32 v{vT0}, 3, v{vT0}")
        e(f"v_lshlrev_b32 v{vT1}, 3, v{vH}")
        e(f"v_add_u32 v{vT1}, v{vT1}, v{vT0}")
        e(f"v_lshlrev_b32 v{vT1}, 8, v{vT1}")
        e(f"v_lshrrev_b32 v{vT2}, 4, v{vLane}")
        e(f"v_and_b32 v{vT2}, 1, v{vT2}")
        e(f"v_lshlrev_b32 v{vT2}, 5, v{vT2}")
        e(f"v_and_b32 v{vT3}, 3, v{vLane}")
        e(f"v_lshlrev_b32 v{vT3}, 3, v{vT3}")
        e(f"v_add_u32 v{vT1}, v{vT1}, v{vT2}")
        e(f"v_add_u32 v{vT1}, v{vT1}, v{vT3}")
        e("s_lshl_b32 s36, s48, 12")
        e(f"v_add_u32 v{vT1}, s36, v{vT1}")
        for t in range(NT):
            e(f"v_xor_b32 v{vT2}, {t}, v{vT0}")
            e(f"v_lshlrev_b32 v{vT2}, 6, v{vT2}")
            e(f"v_add_u32 v{VT+t}, v{vT1}, v{vT2}")
            e(f"v_add_u32 v{VT+3+t}, {2*ST}, v{VT+t}")
            e(f"v_mov_b32 v{vCs+t}, 0")
        e("s_mov_b32 s40, 0x3f803f80")
    e.stamp('l')
    for c in range(min(NSLOT - 1, nst)):
        ld_issue(c)
        e.stamp('l')
        if c < NSLOT - 2:
            e("s_barrier")
    for c in range(nst):
        e.vmwait([('L', c)])
        if c < 4:
            e.stamp('l')
        e("s_barrier")
        if c < 4:
            e.stamp('l')
        if c + NSLOT - 1 < nst:
            ld_issue(c + NSLOT - 1)
        if ln:
            slot = c % NSLOT
            e(f"s_cmp_lg_u32 s57, {c & 1}")
            e(f"s_cbranch_scc1 L_{name}_nocs{c}")
            for t in range(NT):
                vt = VT + t + (3 if slot >= 2 else 0)
                off = (slot % 2) * ST + A_ST
                bb = VB + t * 4
                e(f"ds_read_b64_tr_b16 v[{bb}:{bb+1}], v{vt} offset:{off}")
                e(f"ds_read_b64_tr_b16 v[{bb+2}:{bb+3}], v{vt} offset:{off + 4*RS}")
            e("s_waitcnt lgkmcnt(0)")
            for t in range(NT):
                bb = VB + t * 4
                for j in range(4):
                    e(f"v_dot2_f32_bf16 v{vCs+t}, v{bb+j}, s40, v{vCs+t}")
            e.label(f"L_{name}_nocs{c}")
    if ln:
        e("s_nop 2")
        for t in range(NT):
            half_combine(e, vCs + t, vT0)
        e(f"v_and_b32 v{vT0}, 31, v{vLane}")
        e(f"v_lshlrev_b32 v{vT0}, 2, v{vT0}")
        e(f"s_mul_i32 s36, s26, 384")
        e(f"s_add_u32 s36, s36, {LDS_SCR + 2048}")
        e(f"v_add_u32 v{vT1}, s36, v{vT0}")
        for t in range(NT):
            e(f"ds_write_b32 v{vT1}, v{vCs+t} offset:{t*128}")
        e("s_waitcnt lgkmcnt(0)")
        e("s_barrier")
    if os.environ.get("LSTAMP") == "1":
        e.dump_stamps(cfg['nwg'] - 1, 7, 0)
    e(f"s_branch {endl}")
    e.vmq = []

    e.label(f"L_{name}_compute")
    if NB == 4:
        e("s_add_u32 s50, s50, s48")
        e("s_mov_b32 s49, 0")
        e("s_mov_b32 s42, s48")
    else:
        e("s_and_b32 s42, s48, 1")
        e("s_add_u32 s50, s50, s42")
        e("s_lshr_b32 s49, s48, 1")
    e("s_lshl_b32 s27, s50, 5")
    e(f"v_and_b32 v{vT0}, 31, v{vLane}")
    e(f"v_add_u32 v{vRow}, s27, v{vT0}")
    if kind == 'qkv':
        e(f"v_lshrrev_b32 v{vT1}, 1, v{vT0}")
        e(f"v_and_b32 v{vT1}, 7, v{vT1}")
        e(f"v_lshlrev_b32 v{vT2}, 7, v{vT0}")
        e("s_lshl_b32 s36, s42, 12")
        e(f"v_add_u32 v{vT2}, s36, v{vT2}")
        for s_ in range(4):
            e(f"v_xor_b32 v{vT3}, {2*s_}, v{vT1}")
            e(f"v_xor_b32 v{vT3}, v{vT3}, v{vH}")
            e(f"v_lshlrev_b32 v{vT3}, 4, v{vT3}")
            e(f"v_add_u32 v{VR+s_}, v{vT2}, v{vT3}")
        VAq = VR + 36
        for s_ in range(4):
            e(f"v_mov_b32 v{VAq+s_}, v{VR+s_}")
            e(f"v_add_u32 v{VAq-4+s_}, {2*ST}, v{VR+s_}")
    else:
        e(f"v_lshlrev_b32 v{VAa}, 4, v{vLane}")
        e(f"s_mul_i32 s36, s42, {KS*1024}")
        e(f"v_add_u32 v{VAa}, s36, v{VAa}")
    e(f"v_lshrrev_b32 v{vT0}, 2, v{vLane}")
    e(f"v_and_b32 v{vT0}, 3, v{vT0}")
    e(f"v_lshlrev_b32 v{vT1}, 3, v{vH}")
    e(f"v_add_u32 v{vT1}, v{vT1}, v{vT0}")
    e(f"v_lshlrev_b32 v{vT1}, {RS.bit_length()-1}, v{vT1}")
    e(f"v_lshrrev_b32 v{vT2}, 4, v{vLane}")
    e(f"v_and_b32 v{vT2}, 1, v{vT2}")
    e(f"v_lshlrev_b32 v{vT2}, 5, v{vT2}")
    e(f"v_and_b32 v{vT3}, 3, v{vLane}")
    e(f"v_lshlrev_b32 v{vT3}, 3, v{vT3}")
    e(f"v_add_u32 v{vT1}, v{vT1}, v{vT2}")
    e(f"v_add_u32 v{vT1}, v{vT1}, v{vT3}")
    if RS == 256:
        for t in range(NT):
            e(f"v_xor_b32 v{vT2}, {t}, v{vT0}")
            e(f"v_lshlrev_b32 v{vT2}, 6, v{vT2}")
            e(f"v_add_u32 v{VT+t}, v{vT1}, v{vT2}")
            e(f"v_add_u32 v{VT+3+t}, {2*ST}, v{VT+t}")
    else:
        e(f"v_lshrrev_b32 v{vT2}, 1, v{vT0}")
        e(f"v_xor_b32 v{vT2}, s49, v{vT2}")
        e(f"v_lshlrev_b32 v{vT2}, 6, v{vT2}")
        e(f"v_add_u32 v{VT}, v{vT1}, v{vT2}")
        e(f"v_add_u32 v{VT+3}, {2*ST}, v{VT}")
    e(f"v_add_u32 v{VAa+1}, {2*ST}, v{VAa}")
    e("s_mov_b32 s40, 0x3f803f80")
    if ln:
        e(f"v_mov_b32 v{vSum}, 0")
        e(f"v_mov_b32 v{vSq}, 0")
    e("s_waitcnt lgkmcnt(0)")
    srd(e, 20, 10, 11, WS_SIZE)
    if kind == 'wo':
        srd(e, 28, 4, 5, S * D * 2)
        srd_off(e, 32, 10, 11, WS_H, S * D * 2)
    elif kind == 'w2':
        srd_off(e, 28, 10, 11, WS_H, S * D * 2)
        srd(e, 32, 54, 55, S * D * 2)
    elif kind == 'w1':
        srd_off(e, 32, 10, 11, WS_H1, S * DFF * 2)
    if kind in ('wo', 'w2'):
        e("s_lshl_b32 s37, s25, 1")
        e("s_add_u32 s37, s37, s49")
        e("s_lshl_b32 s36, s50, 15")
        e("s_lshl_b32 s41, s37, 11")
        e("s_add_u32 s36, s36, s41")
        fm, rm = (VE + 1, VE) if kind == 'wo' else (VE, VE + 1)
        e(f"v_lshlrev_b32 v{fm}, 4, v{vLane}")
        e(f"v_add_u32 v{fm}, s36, v{fm}")
        e(f"v_lshlrev_b32 v{vT0}, 10, v{vRow}")
        e(f"v_lshlrev_b32 v{vT1}, 4, v{vH}")
        e(f"v_add_u32 v{vT0}, v{vT0}, v{vT1}")
        e("s_lshl_b32 s36, s37, 6")
        e(f"v_add_u32 v{rm}, s36, v{vT0}")
        e.vm('R', f"buffer_load_dwordx4 v[{VRES}:{VRES+3}], v{VE}, s[28:31], 0 offen")
        e.vm('R', f"buffer_load_dwordx4 v[{VRES+4}:{VRES+7}], v{VE}, s[28:31], 0 offen offset:{32 if kind=='wo' else 1024}")
    e.stamp()

    def forms(t):
        return 'N' if (kind == 'qkv' and t == 2) else 'T'

    def frag_reads(c, s_, buf):
        slot = c % NSLOT
        hi = 3 if slot >= 2 else 0
        lo = (slot % 2) * ST
        if kind == 'qkv':
            va = VR + 36 + s_ - (4 if slot >= 2 else 0)
            e(f"ds_read_b128 v[{VA+buf*4}:{VA+buf*4+3}], v{va} offset:{lo}")
        else:
            va = VAa + (1 if slot >= 2 else 0)
            e(f"ds_read_b128 v[{VA+buf*4}:{VA+buf*4+3}], v{va} offset:{lo + s_*1024}")
        for t in range(NT):
            bb = VB + buf * NT * 4 + t * 4
            off = lo + A_ST + s_ * 16 * RS
            e(f"ds_read_b64_tr_b16 v[{bb}:{bb+1}], v{VT+hi+t} offset:{off}")
            e(f"ds_read_b64_tr_b16 v[{bb+2}:{bb+3}], v{VT+hi+t} offset:{off + 4*RS}")

    first = True
    nrd = 2 * NT + 1
    for _ in range(NSLOT - 2):
        e("s_barrier")
    for c in range(nst):
        ns = min(KS, nks - c * KS)
        e("s_barrier")
        if c < 3:
            e.stamp()
        if os.environ.get("NOCOMP") == "1" and c > 0:
            continue
        frag_reads(c, 0, 0)
        for s_ in range(ns):
            buf = s_ & 1
            if s_ + 1 < ns:
                frag_reads(c, s_ + 1, buf ^ 1)
                e(f"s_waitcnt lgkmcnt({nrd})")
            else:
                e("s_waitcnt lgkmcnt(0)")
            a = VA + buf * 4
            for t in range(NT):
                bb = VB + buf * NT * 4 + t * 4
                acc = VACC + t * 16
                cc = "0" if first else f"v[{acc}:{acc+15}]"
                if forms(t) == 'T':
                    e(f"v_mfma_f32_32x32x16_bf16 v[{acc}:{acc+15}], v[{bb}:{bb+3}], v[{a}:{a+3}], {cc}")
                else:
                    e(f"v_mfma_f32_32x32x16_bf16 v[{acc}:{acc+15}], v[{a}:{a+3}], v[{bb}:{bb+3}], {cc}")
                if ln:
                    if t == 0:
                        for j in range(4):
                            e(f"v_dot2_f32_bf16 v{vSum}, v{a+j}, s40, v{vSum}")
                    if t == 1:
                        for j in range(4):
                            e(f"v_dot2_f32_bf16 v{vSq}, v{a+j}, v{a+j}, v{vSq}")
            first = False
    e.stamp()
    e("s_nop 15")
    if ln:
        e("s_barrier")
        half_combine(e, vSum, vT0)
        half_combine(e, vSq, vT0)
        e(f"v_mul_f32 v{vSum}, {f2h(1.0/512)}, v{vSum}")
        e(f"v_mul_f32 v{vSq}, {f2h(1.0/512)}, v{vSq}")
        e(f"v_fma_f32 v{vSq}, -v{vSum}, v{vSum}, v{vSq}")
        e(f"v_max_f32 v{vSq}, 0, v{vSq}")
        rne_bf16(e, vSum, vT0)
        rne_bf16(e, vSq, vT0)
        e(f"v_add_f32 v{vSq}, 0x3727c5ac, v{vSq}")
        rne_bf16(e, vSq, vT0)
        e(f"v_sqrt_f32 v{vSq}, v{vSq}")
        e("s_nop 0")
        rne_bf16(e, vSq, vT0)
        e(f"v_rcp_f32 v{vSq}, v{vSq}")
        e("s_nop 0")
        e(f"v_sub_f32 v{VE}, 0, v{vSum}")
        e(f"v_mov_b32 v{VE+1}, v{VE}")
        e(f"v_mov_b32 v{VE+2}, v{vSq}")
        e(f"v_mov_b32 v{VE+3}, v{vSq}")
        e(f"v_and_b32 v{vT0}, 31, v{vLane}")
        e(f"v_lshlrev_b32 v{vT0}, 2, v{vT0}")
        e(f"v_add_u32 v{vT1}, {LDS_SCR + 2048}, v{vT0}")
        for jj in range(8):
            for t in range(NT):
                e(f"ds_read_b32 v{VR+jj*3+t}, v{vT1} offset:{jj*384 + t*128}")
        e("s_waitcnt lgkmcnt(0)")
        for t in range(NT):
            e(f"v_add_f32 v{vCs+t}, v{VR+t}, v{VR+3+t}")
            for jj in range(2, 8):
                e(f"v_add_f32 v{vCs+t}, v{vCs+t}, v{VR+jj*3+t}")
        e(f"s_lshl_b32 s47, s48, 9")
        e(f"s_add_u32 s47, s47, {LDS_SCR}")
        e(f"v_add_u32 v{vT1}, s47, v{vT0}")
        nT = 2 if kind == 'qkv' else 3
        for t in range(nT):
            e(f"ds_write_b32 v{vT1}, v{vCs+t} offset:{t*128}")
        if kind == 'qkv':
            e(f"ds_write_b32 v{vT1}, v{vSum} offset:256")
            e(f"ds_write_b32 v{vT1}, v{vSq} offset:384")
        e(f"v_lshlrev_b32 v{vT1}, 4, v{vH}")
        e(f"v_add_u32 v{vT1}, s47, v{vT1}")
        e("s_waitcnt lgkmcnt(0)")
        for t in range(nT):
            for q in range(4):
                e(f"ds_read_b128 v[{VR+t*16+q*4}:{VR+t*16+q*4+3}], v{vT1} offset:{t*128 + q*32}")
        e("s_waitcnt lgkmcnt(0)")
    e.stamp()
    for t in range(NT):
        acc = VACC + t * 16
        if forms(t) == 'T':
            if ln:
                for j in range(0, 16, 2):
                    e(f"v_pk_fma_f32 v[{acc+j}:{acc+j+1}], v[{VR+t*16+j}:{VR+t*16+j+1}], v[{VE}:{VE+1}], v[{acc+j}:{acc+j+1}]")
                    e(f"v_pk_mul_f32 v[{acc+j}:{acc+j+1}], v[{acc+j}:{acc+j+1}], v[{VE+2}:{VE+3}]")
            for q in range(4):
                e(f"v_cvt_pk_bf16_f32 v{acc+2*q}, v{acc+4*q}, v{acc+4*q+1}")
                e(f"v_cvt_pk_bf16_f32 v{acc+2*q+1}, v{acc+4*q+2}, v{acc+4*q+3}")
            if kind == 'w1':
                for j in range(8):
                    e(f"v_pk_max_i16 v{acc+j}, v{acc+j}, 0")
            e("s_nop 1")
            for pr in range(2):
                e(f"v_permlane32_swap_b32 v{acc+4*pr}, v{acc+4*pr+2}")
                e(f"v_permlane32_swap_b32 v{acc+4*pr+1}, v{acc+4*pr+3}")
            e("s_nop 1")
            if kind == 'qkv':
                if t == 0:
                    e(f"v_lshlrev_b32 v{vT2}, 5, v{vRow}")
                    e(f"v_lshlrev_b32 v{vT3}, 4, v{vH}")
                    e(f"v_add_u32 v{vT2}, v{vT2}, v{vT3}")
                e(f"s_lshl_b32 s36, s25, 2")
                e(f"s_add_u32 s36, s36, {2*t}")
                e(f"s_lshl_b32 s36, s36, 16")
                e(f"s_add_u32 s37, s36, 65536")
                e(f"buffer_store_dwordx4 v[{acc}:{acc+3}], v{vT2}, s[20:23], s36 offen")
                e(f"buffer_store_dwordx4 v[{acc+4}:{acc+7}], v{vT2}, s[20:23], s37 offen")
            elif kind == 'w1':
                e(f"s_mul_i32 s36, s25, 3")
                e(f"s_add_u32 s36, s36, {t}")
                e(f"s_cmp_ge_u32 s36, 43")
                e(f"s_cbranch_scc1 L_{name}_skip{t}")
                e(f"s_lshl_b32 s36, s36, 11")
                e(f"s_mul_i32 s37, s50, {86*1024}")
                e(f"s_add_u32 s36, s36, s37")
                e(f"v_lshlrev_b32 v{vT2}, 4, v{vLane}")
                e(f"buffer_store_dwordx4 v[{acc}:{acc+3}], v{vT2}, s[32:35], s36 offen")
                e(f"buffer_store_dwordx4 v[{acc+4}:{acc+7}], v{vT2}, s[32:35], s36 offen offset:1024")
                e.label(f"L_{name}_skip{t}")
            else:
                e.vmwait(['R'])
                for j in range(8):
                    a_ = acc + j
                    r_ = VRES + j
                    e(f"v_lshlrev_b32 v{vT0}, 16, v{a_}")
                    e(f"v_and_b32 v{vT1}, 0xffff0000, v{a_}")
                    e(f"v_lshlrev_b32 v{vT2}, 16, v{r_}")
                    e(f"v_and_b32 v{vT3}, 0xffff0000, v{r_}")
                    e(f"v_add_f32 v{vT0}, v{vT0}, v{vT2}")
                    e(f"v_add_f32 v{vT1}, v{vT1}, v{vT3}")
                    e(f"v_cvt_pk_bf16_f32 v{a_}, v{vT0}, v{vT1}")
                o2 = 1024 if kind == 'wo' else 32
                e(f"buffer_store_dwordx4 v[{acc}:{acc+3}], v{VE+1}, s[32:35], 0 offen")
                e(f"buffer_store_dwordx4 v[{acc+4}:{acc+7}], v{VE+1}, s[32:35], 0 offen offset:{o2}")
        else:
            for q in range(4):
                e(f"ds_read_b128 v[{VR+q*4}:{VR+q*4+3}], v{vT1} offset:{256 + q*32}")
                e(f"ds_read_b128 v[{VR+16+q*4}:{VR+16+q*4+3}], v{vT1} offset:{384 + q*32}")
            e("s_waitcnt lgkmcnt(0)")
            for j in range(16):
                e(f"v_fma_f32 v{acc+j}, -v{VR+j}, v{vCs+t}, v{acc+j}")
                e(f"v_mul_f32 v{acc+j}, v{VR+16+j}, v{acc+j}")
            for q in range(4):
                e(f"v_cvt_pk_bf16_f32 v{acc+2*q}, v{acc+4*q}, v{acc+4*q+1}")
                e(f"v_cvt_pk_bf16_f32 v{acc+2*q+1}, v{acc+4*q+2}, v{acc+4*q+3}")
            e(f"v_and_b32 v{vT2}, 15, v{vLane}")
            e(f"v_lshlrev_b32 v{vT2}, 5, v{vT2}")
            e(f"v_lshlrev_b32 v{vT3}, 4, v{vH}")
            e(f"v_add_u32 v{vT2}, v{vT2}, v{vT3}")
            e(f"v_bfe_u32 v{vT3}, v{vLane}, 4, 1")
            e(f"v_lshlrev_b32 v{vT3}, 16, v{vT3}")
            e(f"v_add_u32 v{vT2}, v{vT2}, v{vT3}")
            e(f"s_lshl_b32 s36, s25, 17")
            e(f"s_lshl_b32 s37, s27, 5")
            e(f"s_add_u32 s36, s36, s37")
            e(f"s_add_u32 s36, s36, {WS_VT}")
            e(f"buffer_store_dwordx4 v[{acc}:{acc+3}], v{vT2}, s[20:23], s36 offen")
            e(f"buffer_store_dwordx4 v[{acc+4}:{acc+7}], v{vT2}, s[20:23], s36 offen offset:512")
    e.stamp()
    e("s_waitcnt vmcnt(0)")
    e.stamp()
    if os.environ.get("LSTAMP") != "1":
        e.dump_stamps(cfg['nwg'] - 1, 11, 8)
    e.label(endl)
    e("s_endpgm")
    e.vmq = []
    return lds_total, nvgpr


def attn_kernel(e, name):
    endl = f"L_{name}_end"
    vLane, vH, vT0, vT1, vT2, vT3 = 1, 2, 3, 4, 5, 6
    vQoff, vKa, vVa = 7, 8, 9
    vMax, vSumv = 10, 11
    vQi = 12
    VQ = 16
    VK = 20
    VS = 56
    VV = 200
    VO = 20
    VP = 36
    LK = 0
    LV = 16384
    e.label(name)
    e("s_cmp_ge_u32 s2, 256")
    e(f"s_cbranch_scc1 {endl}")
    e.stamp()
    e("s_load_dwordx2 s[8:9], s[0:1], 64")
    e("s_and_b32 s24, s2, 7")
    e("s_lshl_b32 s24, s24, 2")
    e("s_lshr_b32 s25, s2, 3")
    e("s_and_b32 s26, s25, 3")
    e("s_add_u32 s24, s24, s26")
    e("s_lshr_b32 s25, s2, 5")
    e(f"v_and_b32 v{vLane}, 63, v0")
    e(f"v_lshrrev_b32 v{vT0}, 6, v0")
    e("s_nop 0")
    e(f"v_readfirstlane_b32 s26, v{vT0}")
    e(f"v_lshrrev_b32 v{vH}, 5, v{vLane}")
    e("s_lshl_b32 s27, s25, 3")
    e("s_add_u32 s27, s27, s26")
    e("s_mov_b32 s29, s27")
    e("s_lshl_b32 s27, s27, 5")
    e("s_waitcnt lgkmcnt(0)")
    e("s_lshl_b32 s28, s24, 16")
    e("s_add_u32 s12, s8, s28")
    e("s_addc_u32 s13, s9, 0")
    e("s_and_b32 s13, s13, 0xffff")
    e("s_mov_b32 s14, 65536")
    e("s_mov_b32 s15, 0x00020000")
    e(f"s_add_u32 s16, s12, {32*65536}")
    e("s_addc_u32 s17, s13, 0")
    e("s_and_b32 s17, s17, 0xffff")
    e("s_mov_b32 s18, 65536")
    e("s_mov_b32 s19, 0x00020000")
    e(f"s_add_u32 s20, s12, {WS_VT}")
    e("s_addc_u32 s21, s13, 0")
    e("s_and_b32 s21, s21, 0xffff")
    e("s_mov_b32 s22, 65536")
    e("s_mov_b32 s23, 0x00020000")
    srd_off(e, 32, 8, 9, WS_O, S * D * 2)
    e(f"v_lshlrev_b32 v{vT0}, 4, v{vLane}")
    e("s_lshl_b32 s30, s25, 13")
    e("s_sub_u32 s30, s30, 8192")
    e("s_lshl_b32 s31, s26, 11")
    e("s_add_u32 s30, s30, s31")
    e(f"v_add_u32 v{vT1}, s30, v{vT0}")
    e(f"v_add_u32 v{vT2}, 1024, v{vT1}")
    e("s_mov_b32 m0, s31")
    e("s_nop 0")
    e.vm('L', f"buffer_load_dwordx4 v{vT1}, s[16:19], 0 offen lds")
    e("s_add_u32 s36, s31, 1024")
    e("s_mov_b32 m0, s36")
    e("s_nop 0")
    e.vm('L', f"buffer_load_dwordx4 v{vT2}, s[16:19], 0 offen lds")
    e(f"s_add_u32 s36, s31, {LV}")
    e("s_mov_b32 m0, s36")
    e("s_nop 0")
    e.vm('L', f"buffer_load_dwordx4 v{vT1}, s[20:23], 0 offen lds")
    e(f"s_add_u32 s36, s31, {LV+1024}")
    e("s_mov_b32 m0, s36")
    e("s_nop 0")
    e.vm('L', f"buffer_load_dwordx4 v{vT2}, s[20:23], 0 offen lds")
    e(f"v_and_b32 v{vT0}, 31, v{vLane}")
    e(f"v_add_u32 v{vQi}, s27, v{vT0}")
    e(f"v_lshlrev_b32 v{vQoff}, 5, v{vQi}")
    e(f"v_lshlrev_b32 v{vT1}, 4, v{vH}")
    e(f"v_add_u32 v{vQoff}, v{vQoff}, v{vT1}")
    e.vm('L', f"buffer_load_dwordx4 v[{VQ}:{VQ+3}], v{vQoff}, s[12:15], 0 offen")
    if PREF:
        e("s_load_dwordx2 s[40:41], s[0:1], 16")
        e("s_load_dwordx4 s[44:47], s[0:1], 32")
        e("s_lshl_b32 s38, s2, 3")
        e("s_add_u32 s38, s38, s26")
        e("s_lshl_b32 s38, s38, 10")
        e(f"v_lshlrev_b32 v{vT3}, 4, v{vLane}")
        e("s_waitcnt lgkmcnt(0)")
        for (lo, hi, sz) in ((40, 41, 512*1024), (44, 45, 1376*1024), (46, 47, 1376*1024)):
            e(f"s_mov_b32 s48, s{lo}")
            e(f"s_and_b32 s49, s{hi}, 0xffff")
            e(f"s_mov_b32 s50, {sz}")
            e("s_mov_b32 s51, 0x00020000")
            e.vm('P', f"buffer_load_dwordx4 v[240:243], v{vT3}, s[48:51], s38 offen")
    e(f"v_lshlrev_b32 v{vKa}, 5, v{vT0}")
    e(f"v_add_u32 v{vKa}, v{vKa}, v{vT1}")
    e("s_lshl_b32 s36, s26, 10")
    e(f"v_add_u32 v{vKa}, s36, v{vKa}")
    e(f"v_and_b32 v{vT0}, 15, v{vLane}")
    e(f"v_lshlrev_b32 v{vVa}, 5, v{vT0}")
    e(f"v_add_u32 v{vVa}, v{vVa}, v{vT1}")
    e(f"s_add_u32 s36, s36, {LV}")
    e(f"v_add_u32 v{vVa}, s36, v{vVa}")
    e(f"v_and_b32 v{vT0}, 16, v{vLane}")
    e(f"v_cmp_ne_u32 vcc, 0, v{vT0}")
    e(f"v_mov_b32 v{vT0}, 32768")
    e("s_nop 1")
    e(f"v_cndmask_b32 v{vVa}, v{vVa}, v{vT0}, vcc")
    e(f"v_mov_b32 v{VS}, 0x3f803f80")
    e(f"v_mov_b32 v{VS+1}, 0x3f803f80")
    e(f"v_mov_b32 v{VS+2}, 0x3f803f80")
    e(f"v_mov_b32 v{VS+3}, 0x3f803f80")
    e(f"v_lshlrev_b32 v{vT0}, 4, v0")
    e(f"ds_write_b128 v{vT0}, v[{VS}:{VS+3}] offset:32768")
    e(f"v_cmp_gt_u32 vcc, 128, v0")
    e("s_and_saveexec_b64 s[52:53], vcc")
    e(f"ds_write_b128 v{vT0}, v[{VS}:{VS+3}] offset:{32768+8192}")
    e("s_mov_b64 exec, s[52:53]")
    e("s_waitcnt lgkmcnt(0)")
    e.stamp()
    e.vmwait(['L'])
    e("s_barrier")
    e.stamp()
    for t in range(9):
        e(f"ds_read_b128 v[{VK+4*t}:{VK+4*t+3}], v{vKa} offset:{t*1024}")
    for t in range(9):
        e(f"s_waitcnt lgkmcnt({8-t})")
        e(f"v_mfma_f32_32x32x16_bf16 v[{VS+16*t}:{VS+16*t+15}], v[{VK+4*t}:{VK+4*t+3}], v[{VQ}:{VQ+3}], 0")
    for i in range(8):
        e(f"ds_read_b128 v[{VV+4*i}:{VV+4*i+3}], v{vVa} offset:{i*512}")
    e("s_nop 15")
    e.stamp()
    e(f"v_and_b32 v{vT0}, 31, v{vLane}")
    e(f"v_lshlrev_b32 v{vT1}, 2, v{vH}")
    e(f"v_sub_u32 v{vT0}, v{vT0}, v{vT1}")
    e(f"v_mov_b32 v{vT2}, 0xff800000")
    for r in range(16):
        c = (r & 3) + 8 * (r >> 2)
        e(f"v_cmp_gt_i32 vcc, {c}, v{vT0}")
        e("s_nop 1")
        e(f"v_cndmask_b32 v{VS+r}, v{vT2}, v{VS+r}, vcc")
        e(f"v_cndmask_b32 v{VS+128+r}, v{VS+128+r}, v{vT2}, vcc")
    e("s_cmp_ge_u32 s29, 8")
    e(f"s_cbranch_scc1 L_{name}_allok")
    for t in range(8):
        e(f"s_cmp_ge_u32 s29, {8 - t}")
        e(f"s_cbranch_scc1 L_{name}_ok{t}")
        for r in range(16):
            e(f"v_mov_b32 v{VS+16*t+r}, v{vT2}")
        e.label(f"L_{name}_ok{t}")
    e.label(f"L_{name}_allok")
    e.stamp()
    e(f"v_max3_f32 v{vMax}, v{VS}, v{VS+1}, v{VS+2}")
    i = 3
    while i + 1 < 144:
        e(f"v_max3_f32 v{vMax}, v{vMax}, v{VS+i}, v{VS+i+1}")
        i += 2
    e(f"v_max_f32 v{vMax}, v{vMax}, v{VS+143}")
    e(f"v_mov_b32 v{vT0}, v{vMax}")
    e("s_nop 1")
    e(f"v_permlane32_swap_b32 v{vMax}, v{vT0}")
    e("s_nop 1")
    e(f"v_max_f32 v{vMax}, v{vMax}, v{vT0}")
    c = 0.25 * 1.4426950408889634
    e(f"s_mov_b32 s30, {f2h(c)}")
    e(f"v_mul_f32 v{vMax}, s30, v{vMax}")
    e(f"v_mov_b32 v{vSumv}, 0")
    for i in range(144):
        e(f"v_fma_f32 v{VS+i}, v{VS+i}, s30, -v{vMax}")
        e(f"v_exp_f32 v{VS+i}, v{VS+i}")
    e.stamp()
    for i in range(18):
        t, a = i // 2, i % 2
        b = VV + (i % 8) * 4
        s0 = VS + 16 * t + 8 * a
        pb = VP + (i % 4) * 4
        for j in range(4):
            e(f"v_cvt_pk_bf16_f32 v{pb+j}, v{s0+2*j}, v{s0+2*j+1}")
        nout = min(i + 7, 17) - i
        e(f"s_waitcnt lgkmcnt({nout})")
        e("s_nop 0")
        cc = "0" if i == 0 else f"v[{VO}:{VO+15}]"
        e(f"v_mfma_f32_32x32x16_bf16 v[{VO}:{VO+15}], v[{b}:{b+3}], v[{pb}:{pb+3}], {cc}")
        if i + 8 < 18:
            e(f"ds_read_b128 v[{b}:{b+3}], v{vVa} offset:{(i+8)*512}")
    e.stamp()
    e("s_nop 15")
    e(f"v_rcp_f32 v{vSumv}, v{VO+8}")
    e("s_nop 0")
    for j in range(8):
        e(f"v_mul_f32 v{VO+j}, v{vSumv}, v{VO+j}")
    e(f"v_cvt_pk_bf16_f32 v{VP}, v{VO}, v{VO+1}")
    e(f"v_cvt_pk_bf16_f32 v{VP+1}, v{VO+2}, v{VO+3}")
    e(f"v_cvt_pk_bf16_f32 v{VP+2}, v{VO+4}, v{VO+5}")
    e(f"v_cvt_pk_bf16_f32 v{VP+3}, v{VO+6}, v{VO+7}")
    e("s_nop 1")
    e(f"v_permlane32_swap_b32 v{VP}, v{VP+2}")
    e(f"v_permlane32_swap_b32 v{VP+1}, v{VP+3}")
    e("s_nop 1")
    e(f"v_lshlrev_b32 v{vT0}, 4, v{vLane}")
    e("s_lshl_b32 s28, s29, 5")
    e("s_add_u32 s28, s28, s24")
    e("s_lshl_b32 s28, s28, 10")
    e(f"buffer_store_dwordx4 v[{VP}:{VP+3}], v{vT0}, s[32:35], s28 offen")
    e.stamp()
    e("s_waitcnt vmcnt(0)")
    e.stamp()
    e.dump_stamps(255, 7)
    e.label(endl)
    e("s_endpgm")
    e.vmq = []


def kd(name, vgpr=256):
    vg = ((vgpr + 7) // 8) * 8
    return f""".p2align 6
.amdhsa_kernel {name}
  .amdhsa_next_free_vgpr {vg}
  .amdhsa_next_free_sgpr 100
  .amdhsa_accum_offset {vg}
  .amdhsa_group_segment_fixed_size 0
  .amdhsa_kernarg_size 72
  .amdhsa_user_sgpr_count 2
  .amdhsa_user_sgpr_kernarg_segment_ptr 1
  .amdhsa_system_sgpr_workgroup_id_x 1
.end_amdhsa_kernel
"""


def main():
    hdr = open(f"cdna_kernels/{NAME}.s.ref").read().split("; Override launch")[0]
    kernels = []
    body = ""
    for kind in ['qkv', 'attn', 'wo', 'w1', 'w2']:
        nm = f"k{kind}_kernel"
        e = Em()
        if kind == 'attn':
            attn_kernel(e, nm)
            lds, grid, blk, vg = 32768 + 10240, 256, 512, 256
        else:
            lds, vg = gemm_kernel(e, nm, kind)
            grid = {'qkv': 256, 'wo': 256, 'w1': 240, 'w2': 256}[kind]
            blk = 768
        kernels.append((nm, grid, blk, lds, vg))
        body += f".globl {nm}\n.p2align 8\n.type {nm},@function\n" + e.text()
    out = hdr
    for nm, grid, blk, lds, vg in kernels:
        out += f"; @launch kernel={nm} grid=({grid},1,1) block=({blk},1,1) lds={lds}\n"
    out += '.amdgcn_target "amdgcn-amd-amdhsa--gfx950"\n.text\n' + body
    out += '.section .rodata,"a"\n'
    for nm, grid, blk, lds, vg in kernels:
        out += kd(nm, vg)
    open(sys.argv[1] if len(sys.argv) > 1 else f"cdna_kernels/{NAME}.s", "w").write(out)


main()
```
